```python
import torch

def _softmax(x, axis=-1):
    return torch.softmax(x, dim=axis)
def _gelu(x):
    return torch.nn.functional.gelu(x, approximate="tanh")
def _silu(x):
    return torch.nn.functional.silu(x)
def _sigmoid(x):
    return torch.sigmoid(x)
def _layernorm(x, axis=-1, eps=1e-5):
    m = x.mean(dim=axis, keepdim=True)
    v = x.var(dim=axis, keepdim=True, unbiased=False)
    return (x - m) / torch.sqrt(v + eps)
def _scatter_add(tgt, idx, src, axis=0):
    return tgt.clone().index_add_(axis, idx, src)
def _segment_sum(src, seg, n):
    out = torch.zeros((n,) + src.shape[1:], dtype=src.dtype)
    return out.index_add_(0, seg, src)
def _pad(x, pw):
    flat = tuple(v for pair in reversed(pw) for v in pair)
    return torch.nn.functional.pad(x, flat)

kernel_name = 'concat_heads__linear_kernel_hedgehog__softmax_full_mha__prompt'

def setup_inputs():

    _w = (lambda a: (lambda t: t.to(torch.bfloat16) if t.is_floating_point() else t)(torch.as_tensor(a)))
    def _A_setup():
        B, S, D, H = 1, 2048, 576, 32
        Dh = D // H
        return {
            "x": _w((lambda *s: torch.randn(*s, dtype=torch.bfloat16) * 0.4)(B, S, D)),
            "wqkv": _w((lambda *s: torch.randn(*s, dtype=torch.bfloat16) * 0.4)(D, 3 * D)),
            "w_phi": _w((lambda *s: torch.randn(*s, dtype=torch.bfloat16) * 0.4)(H, Dh, Dh) * (Dh ** -0.5)),
            "wo": _w((lambda *s: torch.randn(*s, dtype=torch.bfloat16) * 0.05)(D, D)),
        }
    _A_in = _A_setup()

    def _B_setup():
        B, S, D = 1, 2048, 576
        return {
            "x": _w((lambda *s: torch.randn(*s, dtype=torch.bfloat16) * 0.2)(B, S, D)),
            "wqkv": _w((lambda *s: torch.randn(*s, dtype=torch.bfloat16) * 0.2)(D, 3 * D)),
            "wo": _w((lambda *s: torch.randn(*s, dtype=torch.bfloat16) * 0.05)(D, D)),
        }
    _B_in = _B_setup()

    return {
        "A_x": _A_in["x"],
        "A_wqkv": _A_in["wqkv"],
        "A_w_phi": _A_in["w_phi"],
        "A_wo": _A_in["wo"],
        "B_x": _B_in["x"],
        "B_wqkv": _B_in["wqkv"],
        "B_wo": _B_in["wo"],
    }

def reference(A_x, A_wqkv, A_w_phi, A_wo, B_x, B_wqkv, B_wo):
    def _A_ref(x, wqkv, w_phi, wo):
        B, S, D = x.shape
        H = 32; Dh = D // H
        qkv = (lambda x, *d: x.permute(*d))((x @ wqkv).reshape(B, S, 3, H, Dh), 2, 0, 3, 1, 4)
        q, k, v = qkv[0], qkv[1], qkv[2]
        pq = torch.einsum("bhsd,hdf->bhsf", q, w_phi)
        pk = torch.einsum("bhsd,hdf->bhsf", k, w_phi)
        phi_q = torch.concatenate([_softmax(pq, axis=-1), _softmax(-pq, axis=-1)], axis=-1)
        phi_k = torch.concatenate([_softmax(pk, axis=-1), _softmax(-pk, axis=-1)], axis=-1)
        kv = torch.einsum("bhsf,bhsd->bhfd", phi_k, v)
        z  = torch.einsum("bhsf->bhf", phi_k)
        num = torch.einsum("bhqf,bhfd->bhqd", phi_q, kv)
        den = torch.einsum("bhqf,bhf->bhq", phi_q, z)[..., None] + 1e-6
        o = num / den
        return (lambda x, *d: x.permute(*d))(o, 0, 2, 1, 3).reshape(B, S, D) @ wo

    def _B_ref(x, wqkv, wo):
        B, S, D = x.shape
        H = 32; Dh = D // H
        qkv = (lambda x, *d: x.permute(*d))((x @ wqkv).reshape(B, S, 3, H, Dh), 2, 0, 3, 1, 4)
        q, k, v = qkv[0], qkv[1], qkv[2]
        scale = Dh ** -0.5
        scores = torch.einsum("bhqd,bhkd->bhqk", q, k) * scale
        p = _softmax(scores, axis=-1)
        o = torch.einsum("bhqk,bhkd->bhqd", p, v)
        return (lambda x, *d: x.permute(*d))(o, 0, 2, 1, 3).reshape(B, S, D) @ wo

    a = _A_ref(A_x, A_wqkv, A_w_phi, A_wo)
    b = _B_ref(B_x, B_wqkv, B_wo)
    return torch.concatenate([a, b], axis=-1)
```

```python
import re, sys, os
STAMPS = int(os.environ.get('STAMPS','0'))
ABL = os.environ.get('ABL','')

class Asm:
    def __init__(self):
        self.lines = []
        self.uid = 0
    def __call__(self, s):
        for l in s.split("\n"):
            l = l.rstrip()
            if 'noload' in ABL and l.strip().endswith(' lds'): continue
            if 'nomfma' in ABL and 'v_mfma' in l: continue
            if 'noread' in ABL and 'ds_read' in l: continue
            if l.strip(): self.lines.append(l if l.endswith(":") or l.startswith(".") or l.startswith(";") else "  " + l.strip())
    def label(self, n): self.lines.append(n + ":")
    def newlabel(self, p="L"):
        self.uid += 1
        return f"{p}_{self.uid}"
    def nop(self, n):
        while n > 0:
            k = min(n, 16); self(f"s_nop {k-1}"); n -= k
    def stamp(self, i):
        if STAMPS: self(f"{'s_memtime' if STAMPS == 2 else 's_memrealtime'} s[{70+2*i}:{71+2*i}]")
    def stamp_flush(self, n, wave_sgpr, kidx, nwaves=8):
        if not STAMPS: return
        self(f"""
        s_load_dwordx2 s[92:93], s[0:1], 72
        s_mov_b64 exec, -1
        s_waitcnt lgkmcnt(0)
        s_add_u32 s92, s92, {(128 + kidx) << 20}
        s_addc_u32 s93, s93, 0
        s_mov_b32 s94, 0x100000
        s_mov_b32 s95, 0x20000
        s_mul_i32 s90, s2, {nwaves}
        s_add_u32 s90, s90, s{wave_sgpr}
        s_lshl_b32 s90, s90, 6
        v_mov_b32 v1, 0
        """)
        for i in range(n):
            self(f"v_mov_b32 v2, s{70+2*i}\nbuffer_store_dword v2, v1, s[92:95], s90 offen offset:{4*i}\ns_nop 1")
    def text(self): return "\n".join(self.lines) + "\n"

def vr(a, n=1): return f"v{a}" if n == 1 else f"v[{a}:{a+n-1}]"
def sr(a, n=1): return f"s{a}" if n == 1 else f"s[{a}:{a+n-1}]"

REG = re.compile(r"^(-|abs\(|\|)?([vas])(\d+|\[(\d+):(\d+)\])\)?\|?$")
def regs_of(op):
    op = op.strip()
    if op in ("vcc", "vcc_lo", "vcc_hi"): return {"vcc"}
    if op in ("exec", "exec_lo", "exec_hi"): return {"exec"}
    if op == "m0": return {"m0"}
    m = REG.match(op)
    if not m: return set()
    k = m.group(2)
    if m.group(4): return {f"{k}{i}" for i in range(int(m.group(4)), int(m.group(5)) + 1)}
    return {f"{k}{m.group(3)}"}

TRANS = ("v_exp_f32", "v_log_f32", "v_rcp_f32", "v_rsq_f32", "v_sqrt_f32", "v_sin_f32", "v_cos_f32", "v_exp_f16", "v_rcp_iflag_f32")
def passes(mn):
    if "32x32x4_2b" in mn: return 16
    if "32x32" in mn: return 8
    if "16x16x4_4b" in mn: return 8
    if "16x16" in mn: return 4
    if "4x4" in mn: return 2
    raise ValueError(mn)

class Ins:
    def __init__(self, text, idx):
        self.text = text.strip(); self.idx = idx
        t = self.text.split(";")[0].strip()
        parts = t.split(None, 1)
        self.mn = parts[0]
        rest = parts[1] if len(parts) > 1 else ""
        toks = [x.strip() for x in re.split(r",(?![^\[]*\])", rest)] if rest else []
        ops = []
        self.mods = ""
        for i, x in enumerate(toks):
            if i == len(toks) - 1:
                p = x.split(None, 1)
                ops.append(p[0]); self.mods = p[1] if len(p) > 1 else ""
            else: ops.append(x)
        self.ops = ops
        mn = self.mn
        for suf in ("_e32", "_e64", "_dpp", "_sdwa"):
            if mn.endswith(suf): mn = mn[:-len(suf)]
        self.base = mn
        self.dpp = self.mn.endswith("_dpp") or "quad_perm" in self.mods or "row_" in self.mods
        self.defs = set(); self.uses = set()
        self.kind = "other"; self.ws = 1
        R = [regs_of(o) for o in ops]
        self.srcA = self.srcB = self.srcC = set()
        self.storedata = set(); self.wide = False
        self.lds_dma = False
        if mn == "s_nop": self.kind = "nop"; self.ws = int(ops[0], 0) + 1
        elif mn.startswith("v_mfma"):
            self.kind = "mfma"; self.defs = R[0]; self.srcA, self.srcB, self.srcC = R[1], R[2], R[3]
            self.uses = R[1] | R[2] | R[3]; self.p = passes(mn)
        elif mn.startswith("v_smfmac"):
            self.kind = "mfma"; self.defs = R[0]; self.srcA = R[1]; self.srcB = R[2] | R[3]; self.srcC = R[0]
            self.uses = R[0] | R[1] | R[2] | R[3]; self.p = passes(mn)
        elif mn.startswith("v_"):
            self.kind = "valu"
            if mn.startswith("v_cmp"):
                self.defs = set(R[0]); self.uses = set().union(*R[1:])
                if mn.startswith("v_cmpx"): self.defs |= {"exec"}
            elif mn in ("v_permlane32_swap_b32", "v_permlane16_swap_b32"):
                self.defs = R[0] | R[1]; self.uses = R[0] | R[1]
            elif mn in ("v_add_co_u32", "v_sub_co_u32", "v_addc_co_u32", "v_subb_co_u32", "v_div_scale_f32"):
                self.defs = R[0] | R[1]; self.uses = set().union(*R[2:])
            elif mn == "v_nop": pass
            else:
                self.defs = set(R[0]); self.uses = set().union(*R[1:]) if len(R) > 1 else set()
                if mn in ("v_fmac_f32", "v_dot2c_f32_bf16", "v_writelane_b32") or "PRESERVE" in self.mods or self.dpp: self.uses |= R[0]
                if mn == "v_cndmask_b32" and len(ops) == 3: self.uses |= {"vcc"}
            self.uses |= {"exec"}
        elif mn.startswith("ds_"):
            self.kind = "ds"
            if mn.startswith("ds_read") or mn.startswith("ds_bpermute") or mn.startswith("ds_swizzle") or "_rtn" in mn:
                self.defs = R[0]; self.uses = set().union(*R[1:])
            else:
                self.uses = set().union(*R); self.storedata = set().union(*R[1:])
            self.uses |= {"exec"}
        elif mn.startswith("buffer_") or mn.startswith("global_"):
            self.kind = "vmem"
            mods = self.mods.split()
            if mn in ("buffer_wbl2", "buffer_inv"): pass
            elif "lds" in mods or "_lds_" in mn:
                self.lds_dma = True; self.uses = set().union(*R) | {"m0"}
            elif "load" in mn:
                self.defs = set(R[0]); self.uses = set().union(*R[1:])
                if "d16" in mn: self.uses |= R[0]
            elif "atomic" in mn:
                self.uses = set().union(*R)
                if "sc0" in mods: self.defs = set(R[0])
            else:
                self.uses = set().union(*R)
                self.storedata = R[0] if mn.startswith("buffer_") else R[1]
                self.wide = mn.endswith("x4") or mn.endswith("x3")
            self.uses |= {"exec"}
        elif mn.startswith("s_load") or mn.startswith("s_buffer_load") or mn in ("s_memtime", "s_memrealtime"):
            self.kind = "smem"; self.defs = R[0]; self.uses = set().union(*R[1:]) if len(R) > 1 else set()
        elif mn == "s_waitcnt": self.kind = "wait"
        elif mn.startswith("s_cbranch") or mn == "s_branch": self.kind = "branch"
        elif mn in ("s_barrier", "s_endpgm", "s_setprio", "s_sleep", "s_sethalt"): self.kind = "other"
        elif mn.startswith("s_"):
            self.kind = "salu"
            if mn.startswith("s_cmp") or mn.startswith("s_bitcmp"): self.uses = set().union(*R)
            else:
                self.defs = set(R[0]); self.uses = set().union(*R[1:]) if len(R) > 1 else set()
                if "saveexec" in mn: self.defs |= {"exec"}; self.uses |= {"exec"}
                if mn in ("s_addk_i32", "s_mulk_i32"): self.uses |= R[0]
        else:
            raise ValueError("unknown instr " + text)
        self.trans = self.base in TRANS

def parse(lines):
    ins = []; labels = {}
    for l in lines:
        s = l.split(";")[0].strip()
        if not s or s.startswith("."): continue
        if s.endswith(":"): labels[s[:-1]] = len(ins); continue
        ins.append(Ins(l, len(ins)))
    succ = []
    for i, x in enumerate(ins):
        if x.mn == "s_endpgm": succ.append([])
        elif x.mn == "s_branch": succ.append([labels[x.ops[0]]])
        elif x.kind == "branch": succ.append([i + 1, labels[x.ops[0]]])
        else: succ.append([i + 1] if i + 1 < len(ins) else [])
    pred = [[] for _ in ins]
    for i, ss in enumerate(succ):
        for s in ss:
            if s < len(ins): pred[s].append(i)
    return ins, succ, pred

def isv(s): return {r for r in s if r[0] in "va" and r not in ("vcc",)}
def iss(s): return {r for r in s if r[0] == "s" or r == "vcc"}

def need(p, c):
    n = 0
    XD = {2: 5, 4: 8, 8: 12, 16: 20}; XC = {2: 4, 4: 6, 8: 10, 16: 18}; XW = {2: 1, 4: 3, 8: 7, 16: 15}
    if p.kind == "valu":
        pv = isv(p.defs); ps = iss(p.defs)
        if c.kind == "mfma" and pv & c.uses: n = max(n, 2)
        if c.kind == "valu":
            if p.trans and not c.trans and pv & c.uses: n = max(n, 1)
            if c.dpp and pv & c.uses: n = max(n, 2)
            if c.base.startswith("v_permlane") and pv & c.uses: n = max(n, 2)
            if c.base in ("v_readfirstlane_b32", "v_readlane_b32") and pv & c.uses: n = max(n, 1)
            if ps & c.uses: n = max(n, 2)
            if c.base in ("v_readlane_b32", "v_writelane_b32") and ps & c.uses: n = max(n, 4)
            if ("op_sel" in p.mods or "dst_sel" in p.mods) and pv & (c.uses | c.defs): n = max(n, 1)
        if c.kind == "vmem" and ps & c.uses: n = max(n, 5)
        if c.kind in ("smem",) and ps & c.uses: n = max(n, 1)
        if "exec" in p.defs and c.kind in ("mfma", "valu"): n = max(n, 5)
    if p.kind == "mfma":
        d = p.defs
        if c.kind == "mfma":
            if d & (c.srcA | c.srcB): n = max(n, XD[p.p])
            if d & c.srcC and not (d == c.srcC and p.p == c.p): n = max(n, XC[p.p])
            if d & c.defs and not (d == c.defs and p.p == c.p) : n = max(n, XC[p.p])
        elif c.kind in ("valu", "ds", "vmem"):
            if d & (c.uses | c.defs): n = max(n, XD[p.p])
            if c.kind == "valu" and p.srcC & c.defs: n = max(n, XW[p.p])
    if p.kind == "salu" and "m0" in p.defs and c.lds_dma: n = max(n, 1)
    if p.kind == "vmem" and p.wide and p.storedata & c.defs: n = max(n, 2 if c.kind == "valu" else 1)
    return n

def check_hazards(lines, name=""):
    ins, succ, pred = parse(lines)
    errs = []
    MAXW = 20
    for c in ins:
        if c.kind in ("nop", "wait", "branch", "other"): continue
        stack = [(p, 0) for p in pred[c.idx]]
        seen = {}
        while stack:
            i, dist = stack.pop()
            if dist >= MAXW or seen.get(i, 99) <= dist: continue
            seen[i] = dist
            p = ins[i]
            n = need(p, c)
            if n > dist: errs.append(f"{name}: hazard need {n} have {dist}: [{p.idx}] {p.text}  ->  [{c.idx}] {c.text}")
            for q in pred[i]: stack.append((q, dist + p.ws))
    return errs

def check_waits(lines, name="", maxvisit=2):
    ins, succ, pred = parse(lines)
    errs = set()
    seen = set()
    stack = [(0, (), (), ())]
    steps = 0
    while stack:
        pc, vm, lg, sm = stack.pop()
        while True:
            key = (pc, vm, lg, sm)
            x = ins[pc]
            if len(pred[pc]) > 1 or pc == 0:
                if key in seen: break
                seen.add(key)
            steps += 1
            if steps > 3000000: errs.add(name + ": wait check gave up"); return sorted(errs)
            touched = x.uses | x.defs
            pend = set()
            for q in vm: pend |= q
            for q in lg: pend |= q
            for q in sm: pend |= q
            bad = touched & pend
            if bad and not (x.kind == "vmem" and "d16" in x.mn):
                errs.add(f"{name}: pending load regs {sorted(bad)[:4]} touched by [{x.idx}] {x.text}")
            if x.kind == "wait":
                t = x.text
                m = re.search(r"vmcnt\((\d+)\)", t)
                if m:
                    n = int(m.group(1)); vm = vm[len(vm) - n:] if n < len(vm) else vm
                    if n == 0: vm = ()
                m = re.search(r"lgkmcnt\((\d+)\)", t)
                if m:
                    n = int(m.group(1))
                    if n == 0: lg = (); sm = ()
                    elif not sm: lg = lg[len(lg) - n:] if n < len(lg) else lg
            elif x.kind == "vmem" and x.mn not in ("buffer_wbl2", "buffer_inv"): vm = (vm + (frozenset(x.defs),))[-64:]
            elif x.kind == "ds": lg = (lg + (frozenset(x.defs),))[-32:]
            elif x.kind == "smem": sm = sm + (frozenset(x.defs),)
            ss = succ[pc]
            if not ss: break
            for s in ss[1:]: stack.append((s, vm, lg, sm))
            pc = ss[0]
    return sorted(errs)

def kernel_text(name, body_lines, nvgpr, nsgpr=96, accum=None):
    accum = accum or ((nvgpr + 3) // 4 * 4)
    errs = check_hazards(body_lines, name) + check_waits(body_lines, name)
    for e in errs[:40]: print("CHECK:", e, file=sys.stderr)
    if errs: print(f"CHECK: {len(errs)} problems in {name}", file=sys.stderr)
    code = f""".text
.globl {name}
.p2align 8
.type {name},@function
{name}:
""" + "\n".join(body_lines) + f"""
.section .rodata,"a"
.p2align 6
.amdhsa_kernel {name}
  .amdhsa_next_free_vgpr {nvgpr}
  .amdhsa_next_free_sgpr {nsgpr}
  .amdhsa_accum_offset {accum}
  .amdhsa_group_segment_fixed_size 0
  .amdhsa_kernarg_size 80
  .amdhsa_user_sgpr_count 2
  .amdhsa_user_sgpr_kernarg_segment_ptr 1
  .amdhsa_system_sgpr_workgroup_id_x 1
  .amdhsa_float_denorm_mode_32 3
.end_amdhsa_kernel
"""
    return code, len(errs)
```

```python
from asmlib import *
import math, struct
def f32bits(x): return struct.unpack("<I", struct.pack("<f", x))[0]
QSCALE = (18 ** -0.5) * math.log2(math.e)
MB = 1 << 20
WS_BR = 8 * MB
WS_V = 4 * MB
WS_REM = 6 * MB + MB // 2
K1_STAGE = 45056
K1_LDS = 3 * K1_STAGE

def rho_v(a, dst, src, t1):
    a(f"""
    v_and_b32 {dst}, 19, {src}
    v_lshrrev_b32 {t1}, 1, {src}
    v_and_b32 {t1}, 4, {t1}
    v_or_b32 {dst}, {dst}, {t1}
    v_lshlrev_b32 {t1}, 1, {src}
    v_and_b32 {t1}, 8, {t1}
    v_or_b32 {dst}, {dst}, {t1}
    """)

def gen_k1(name):
    a = Asm()
    S_B, S_RB, S_CG, S_W = 24, 25, 26, 27
    a(f"""
    s_cmp_ge_u32 s2, 256
    s_cbranch_scc1 {name}_end
    """)
    a.stamp(0)
    a(f"""
    s_load_dwordx4 s[4:7], s[0:1], 0
    s_load_dwordx4 s[8:11], s[0:1], 32
    s_load_dwordx2 s[28:29], s[0:1], 72
    v_lshrrev_b32 v1, 6, v0
    v_and_b32 v0, 63, v0
    s_and_b32 s{S_B}, s2, 1
    v_readfirstlane_b32 s{S_W}, v1
    s_lshr_b32 s3, s2, 3
    s_and_b32 s{S_RB}, s3, 7
    s_lshl_b32 s30, s2, 2
    s_and_b32 s30, s30, 8
    s_or_b32 s{S_RB}, s{S_RB}, s30
    s_lshr_b32 s{S_CG}, s3, 3
    s_and_b32 s30, s2, 4
    s_or_b32 s{S_CG}, s{S_CG}, s30
    s_cmp_eq_u32 s{S_B}, 0
    s_waitcnt lgkmcnt(0)
    s_cselect_b32 s12, s4, s8
    s_cselect_b32 s13, s5, s9
    s_cselect_b32 s16, s6, s10
    s_cselect_b32 s17, s7, s11
    s_mov_b32 s14, {2048*1152}
    s_mov_b32 s15, 0x20000
    s_mov_b32 s18, {576*3456}
    s_mov_b32 s19, 0x20000
    s_cmp_ge_u32 s{S_W}, 4
    s_cbranch_scc0 {name}_compute
    """)
    LW = 31
    a(f"""
    s_sub_u32 s{LW}, s{S_W}, 4
    v_lshrrev_b32 v1, 3, v0
    v_mul_u32_u24 v1, 1152, v1
    v_lshrrev_b32 v2, 4, v0
    v_and_b32 v3, 7, v0
    v_xor_b32 v3, v3, v2
    v_lshl_add_u32 v4, v3, 4, v1
    v_xor_b32 v3, 4, v3
    v_lshl_add_u32 v5, v3, 4, v1
    v_add_u32 v5, {8*1152}, v5
    s_lshl_b32 s32, s{LW}, 6
    v_add_u32 v1, s32, v0
    """)
    for q in range(1792): assert (q * 2428) >> 16 == q // 27
    for m in range(7):
        a(f"""
        v_add_u32 v2, {256*m}, v1
        v_mul_u32_u24 v3, 2428, v2
        v_lshrrev_b32 v3, 16, v3
        v_mul_u32_u24 v13, 27, v3
        v_sub_u32 v13, v2, v13
        v_and_b32 v14, 0x30, v3
        v_and_b32 v15, 3, v3
        v_lshl_add_u32 v14, v15, 2, v14
        v_bfe_u32 v15, v3, 2, 2
        v_add_u32 v14, v14, v15
        v_mul_u32_u24 v14, 3456, v14
        v_lshl_add_u32 v{6+m}, v13, 4, v14
        """)
    a(f"""
    v_mov_b32 v13, 0x7fffff00
    v_cmp_gt_u32 vcc, 1728, v2
    s_mul_i32 s33, s{S_RB}, {128*1152}
    s_mul_i32 s34, s{LW}, {32*1152}
    v_cndmask_b32 v12, v13, v12, vcc
    s_add_u32 s33, s33, s34
    s_mul_i32 s34, s{S_CG}, 432
    s_lshl_b32 s35, s{LW}, 12
    s_lshl_b32 s36, s{LW}, 10
    s_add_u32 s36, s36, 16384
    s_mov_b32 s37, 0
    s_mov_b32 s40, 3
    """)
    def issue():
        a(f"""
        s_add_u32 s38, s37, s35
        s_mov_b32 m0, s38
        s_add_u32 s39, s33, {16*1152}
        buffer_load_dwordx4 v4, s[12:15], s33 offen lds
        s_add_u32 m0, s38, 1024
        s_add_u32 s41, s37, s36
        buffer_load_dwordx4 v5, s[12:15], s33 offen lds
        s_add_u32 m0, s38, 2048
        s_add_u32 s33, s33, 128
        buffer_load_dwordx4 v4, s[12:15], s39 offen lds
        s_add_u32 m0, s38, 3072
        s_add_u32 s37, s37, {K1_STAGE}
        buffer_load_dwordx4 v5, s[12:15], s39 offen lds
        """)
        for m in range(7):
            a(f"s_add_u32 m0, s41, {4096*m}")
            if m == 0: a(f"s_cmp_eq_u32 s37, {3*K1_STAGE}")
            elif m == 1: a("s_nop 0")
            else: a("s_nop 0")
            if m == 0: a("s_cselect_b32 s37, 0, s37")
            a(f"buffer_load_dwordx4 v{6+m}, s[16:19], s34 offen lds")
        a(f"s_add_u32 s34, s34, {64*3456}")
    a.stamp(1)
    a.label(f"{name}_lpro")
    issue()
    a(f"""
    s_sub_u32 s40, s40, 1
    s_cmp_lg_u32 s40, 0
    s_cbranch_scc1 {name}_lpro
    """)
    a.stamp(2)
    a(f"""
    s_waitcnt vmcnt(22)
    """)
    a.stamp(3)
    a(f"""
    s_barrier
    s_mov_b32 s40, 6
    """)
    a.label(f"{name}_lloop")
    a("s_waitcnt vmcnt(11)\ns_barrier")
    issue()
    a(f"""
    s_sub_u32 s40, s40, 1
    s_cmp_lg_u32 s40, 0
    s_cbranch_scc1 {name}_lloop
    s_waitcnt vmcnt(11)
    s_barrier
    s_waitcnt vmcnt(0)
    """)
    a.stamp(4)
    a(f"""
    s_barrier
    s_barrier
    """)
    a.stamp(5)
    a.stamp_flush(6, S_W, 0)
    a("s_endpgm")
    a.label(f"{name}_compute")
    ACC = 16; XF = 128; WF = 144
    XA = 2; WA = 6
    S_RP, S_CW = 32, 33
    JA, JB = 34, 37
    a(f"""
    s_lshr_b32 s{S_RP}, s{S_W}, 1
    s_and_b32 s{S_CW}, s{S_W}, 1
    s_add_u32 s20, s28, 0
    s_addc_u32 s21, s29, 0
    s_mul_i32 s30, s{S_B}, {WS_BR}
    s_add_u32 s20, s20, s30
    s_addc_u32 s21, s21, 0
    s_mov_b32 s22, {WS_BR}
    s_mov_b32 s23, 0x20000
    """)
    dflt = [(0,11),(1,2),(3,4),(5,6),(7,8),(9,10)]
    mix = [(0,3),(1,2),(5,6),(4,11),(7,8),(9,10)]
    def pack(t):
        v = 0
        for i,(x,y) in enumerate(t): v |= (x << (8*i)) | (y << (8*i+4))
        return v
    a(f"""
    s_cmp_eq_u32 s{S_CG}, 5
    s_cselect_b32 s30, {pack(mix[:3])}, {pack(mix[:3])}
    s_cselect_b32 s40, s30, {pack(dflt[:3])}
    s_mov_b32 s30, {pack(mix[3:])}
    s_cselect_b32 s41, s30, {pack(dflt[3:])}
    s_cmp_eq_u32 s{S_CW}, 0
    s_cselect_b32 s40, s40, s41
    """)
    for t in range(3):
        a(f"s_bfe_u32 s{JA+t}, s40, {(4<<16) | (8*t)}\ns_bfe_u32 s{JB+t}, s40, {(4<<16) | (8*t+4)}")
    a(f"""
    v_and_b32 v10, 31, v0
    v_lshrrev_b32 v11, 5, v0
    v_bfe_u32 v12, v0, 1, 3
    s_lshl_b32 s30, s{S_RP}, 13
    v_lshl_add_u32 v13, v10, 7, s30
    """)
    for ks in range(4):
        a(f"v_or_b32 v14, {2*ks}, v11\nv_xor_b32 v14, v14, v12\nv_lshl_add_u32 v{XA+ks}, v14, 4, v13")
    a(f"""
    v_bfe_u32 v12, v0, 2, 2
    v_lshlrev_b32 v12, 1, v12
    v_add_u32 v12, v12, v11
    v_mul_u32_u24 v12, 864, v12
    v_add_u32 v12, 16384, v12
    v_and_b32 v13, 3, v0
    v_bfe_u32 v14, v0, 4, 1
    v_cmp_eq_u32 vcc, 0, v14
    """)
    for t in range(3):
        for (s, d) in ((JA+t, 40), (JB+t, 41)):
            a(f"s_lshr_b32 s30, s{s}, 1\ns_mul_i32 s30, s30, 9\ns_and_b32 s31, s{s}, 1\ns_mul_i32 s31, s31, 5\ns_add_u32 s{d}, s30, s31")
        a(f"v_mov_b32 v15, s41\nv_mov_b32 v1, s40\nv_cndmask_b32 v15, v15, v1, vcc\nv_add_u32 v15, v15, v13\nv_lshl_add_u32 v{WA+t}, v15, 3, v12")
    a(f"""
    v_lshl_add_u32 v15, v14, 2, v13
    v_mul_u32_u24 v1, 9, v15
    v_add_u32 v1, 4, v1
    v_add_u32 v13, -4, v15
    v_cmp_gt_u32 vcc, 6, v15
    s_nop 1
    v_cndmask_b32 v1, v13, v1, vcc
    v_lshl_add_u32 v{WA+3}, v1, 3, v12
    """)
    for r in range(112): a(f"v_mov_b32 v{ACC+r}, 0")
    a(f"""
    s_mov_b32 s40, 9
    s_mov_b32 s41, 0
    s_cmp_eq_u32 s{S_CW}, 0
    """)
    def reads(ks, buf):
        x = XF + 8*buf; w = WF + 16*buf
        L = [f"ds_read_b128 {vr(x,4)}, v{XA+ks}"]
        L += [f"ds_read_b64_tr_b16 {vr(w,2)}, v{WA} offset:{ks*6912}", f"ds_read_b64_tr_b16 {vr(w+2,2)}, v{WA} offset:{ks*6912+432}"]
        L += [f"ds_read_b128 {vr(x+4,4)}, v{XA+ks} offset:4096"]
        for t in range(1,4):
            L += [f"ds_read_b64_tr_b16 {vr(w+4*t,2)}, v{WA+t} offset:{ks*6912}", f"ds_read_b64_tr_b16 {vr(w+4*t+2,2)}, v{WA+t} offset:{ks*6912+432}"]
        return L
    def mfmas(buf, ori, cw):
        x = XF + 8*buf; w = WF + 16*buf
        L = []
        for t in range(3):
            for rt in range(2):
                d = vr(ACC + 16*(3*rt+t), 16)
                A, B = (vr(w+4*t,4), vr(x+4*rt,4)) if ori[t] == 1 else (vr(x+4*rt,4), vr(w+4*t,4))
                L.append(f"v_mfma_f32_32x32x16_bf16 {d}, {A}, {B}, {d}")
        d = vr(ACC+96, 16)
        L.append(f"v_mfma_f32_32x32x16_bf16 {d}, {vr(x+4*cw,4)}, {vr(w+12,4)}, {d}")
        return L
    def mainloop(tag, ori, cw):
        a.stamp(1)
        a("s_barrier")
        a.stamp(2)
        for l in reads(0, 0): a(l)
        a.label(f"{name}_loop_{tag}")
        for ks in range(4):
            M = mfmas(ks & 1, ori, cw)
            R = reads((ks+1) & 3, (ks+1) & 1)
            a("s_waitcnt lgkmcnt(0)")
            a(M[0])
            if ks == 3: a("s_barrier")
            for g in range(3):
                for l in R[3*g:3*g+3]: a(l)
                a(M[g+1])
            a(R[9])
            if ks == 2:
                a(f"s_add_u32 s41, s41, 1\ns_cmp_eq_u32 s41, 3\ns_cselect_b32 s42, s43, s44\ns_cselect_b32 s41, 0, s41")
            a(M[4])
            if ks == 2:
                for r in range(4): a(f"v_add_u32 v{XA+r}, s42, v{XA+r}")
            a(M[5])
            if ks == 2:
                for r in range(4): a(f"v_add_u32 v{WA+r}, s42, v{WA+r}")
            if ks == 3: a("s_sub_u32 s40, s40, 1\ns_cmp_lg_u32 s40, 0")
            a(M[6])
        a(f"s_cbranch_scc1 {name}_loop_{tag}")
    T = 128
    def ep_common():
        a.stamp(3)
        a("s_waitcnt lgkmcnt(0)")
        rho_v(a, "v12", "v10", "v13")
        a(f"""
        v_lshl_add_u32 v12, v11, 5, v12
        v_lshlrev_b32 v12, 4, v12
        s_lshl_b32 s45, s{S_RB}, 2
        s_lshl_b32 s30, s{S_RP}, 1
        s_add_u32 s45, s45, s30
        s_mul_i32 s46, s{S_CG}, 12
        s_mov_b32 s48, {f32bits(QSCALE)}
        v_and_b32 v13, 15, v0
        v_lshlrev_b32 v13, 4, v13
        v_mul_u32_u24 v15, 288, v11
        v_add_u32 v13, v13, v15
        v_cmp_eq_u32 s[52:53], 0, v14
        """)
    def ep_o1(t):
        for half, J in ((0, JA+t), (1, JB+t)):
            lab = a.newlabel(name + "_ns")
            a(f"""
            s_add_u32 s47, s46, s{J}
            s_cmp_lt_u32 s47, 32
            s_cselect_b32 s30, s{S_B}, 0
            s_lshl_b32 s47, s47, 6
            s_add_u32 s47, s47, s45
            s_lshl_b32 s47, s47, 10
            s_cmp_eq_u32 s30, 0
            s_cbranch_scc1 {lab}
            """)
            for rt in range(2):
                d = ACC + 16*(3*rt+t) + 8*half
                for r in range(8): a(f"v_mul_f32 v{d+r}, s48, v{d+r}")
            a.label(lab)
            for rt in range(2):
                d = ACC + 16*(3*rt+t) + 8*half
                o = T + 4*((2*half+rt) + 4*(t&1))
                for r in range(4): a(f"v_cvt_pk_bf16_f32 v{o+r}, v{d+2*r}, v{d+2*r+1}")
                a(f"buffer_store_dwordx4 {vr(o,4)}, v12, s[20:23], s47 offen offset:{1024*rt}")
    def ep_o2(t):
        a(f"""
        s_add_u32 s30, s46, s{JA+t}
        s_sub_u32 s30, s30, 64
        s_mul_i32 s30, s30, 73728
        s_add_u32 s31, s46, s{JB+t}
        s_sub_u32 s31, s31, 64
        s_mul_i32 s31, s31, 73728
        v_mov_b32 v1, s30
        v_mov_b32 v15, s31
        v_cndmask_b32 v1, v15, v1, s[52:53]
        v_add_u32 v1, v1, v13
        s_mul_i32 s47, s45, 1152
        s_add_u32 s47, s47, {WS_V}
        """)
        for rt in range(2):
            for sub in range(2):
                d = ACC + 16*(3*rt+t) + 8*sub
                o = T + 4*((2*rt+sub) + 4*(t&1))
                for r in range(4): a(f"v_cvt_pk_bf16_f32 v{o+r}, v{d+2*r}, v{d+2*r+1}")
                a(f"buffer_store_dwordx4 {vr(o,4)}, v1, s[20:23], s47 offen offset:{1152*rt+576*sub}")
    def ep_rem():
        d = ACC + 96
        lv = a.newlabel(name + "_nov"); lq = a.newlabel(name + "_noq")
        a(f"""
        s_add_u32 s49, s45, s{S_CW}
        v_lshrrev_b32 v2, 1, v10
        v_add_u32 v2, s46, v2
        v_and_b32 v3, 1, v10
        v_cmp_gt_u32 s[54:55], 24, v10
        v_cmp_le_u32 vcc, 64, v2
        s_and_b64 s[56:57], s[54:55], vcc
        s_andn2_b64 s[54:55], s[54:55], vcc
        v_cmp_eq_u32 vcc, 0, v3
        s_and_b64 s[54:55], s[54:55], vcc
        s_cmp_eq_u64 s[56:57], 0
        s_cbranch_scc1 {lv}
        v_add_u32 v4, -64, v2
        v_mul_u32_u24 v4, 73728, v4
        v_mul_u32_u24 v5, 288, v11
        v_add_u32 v4, v4, v5
        v_lshl_add_u32 v4, v3, 4, v4
        s_mul_i32 s47, s49, 1152
        s_add_u32 s47, s47, {WS_V + 256}
        """)
        for sub in range(2):
            for r in range(4): a(f"v_cvt_pk_bf16_f32 v{T+32+4*sub+r}, v{d+8*sub+2*r}, v{d+8*sub+2*r+1}")
        a("s_mov_b64 exec, s[56:57]")
        for sub in range(2): a(f"buffer_store_dwordx4 {vr(T+32+4*sub,4)}, v4, s[20:23], s47 offen offset:{576*sub}")
        a("s_mov_b64 exec, -1")
        a.label(lv)
        a(f"""
        s_cmp_eq_u64 s[54:55], 0
        s_cbranch_scc1 {lq}
        s_cmp_eq_u32 s{S_B}, 0
        s_cselect_b32 s30, 1.0, s48
        v_mov_b32 v5, s30
        v_cmp_gt_u32 vcc, 32, v2
        v_lshlrev_b32 v4, 13, v2
        v_lshl_add_u32 v4, v11, 5, v4
        v_cndmask_b32 v5, 1.0, v5, vcc
        s_lshl_b32 s47, s49, 7
        s_add_u32 s47, s47, {WS_REM}
        """)
        for r in range(16): a(f"v_mul_f32 v{d+r}, v5, v{d+r}")
        for r in range(16): a(f"v_mov_b32_dpp v{T+r}, v{d+r} quad_perm:[1,1,3,3] row_mask:0xf bank_mask:0xf")
        for r in range(16): a(f"v_cvt_pk_bf16_f32 v{T+16+r}, v{d+r}, v{T+r}")
        a("s_mov_b64 exec, s[54:55]")
        for jq in range(4): a(f"buffer_store_dwordx4 {vr(T+16+4*jq,4)}, v4, s[20:23], s47 offen offset:{64*(jq>>1)+16*(jq&1)}")
        a("s_mov_b64 exec, -1")
        a.label(lq)
    a(f"""
    s_mov_b32 s43, {-2*K1_STAGE & 0xffffffff}
    s_mov_b32 s44, {K1_STAGE}
    s_cbranch_scc0 {name}_cw1
    s_cmp_lt_u32 s{S_CG}, 5
    s_cbranch_scc1 {name}_v1110
    s_cmp_eq_u32 s{S_CG}, 5
    s_cbranch_scc1 {name}_v1120
    s_branch {name}_v2220
    """)
    a.label(f"{name}_cw1")
    a(f"s_cmp_lt_u32 s{S_CG}, 5\ns_cbranch_scc1 {name}_v1111\ns_branch {name}_v2221")
    for ori, cw in (((1,1,1),0), ((1,1,2),0), ((2,2,2),0), ((1,1,1),1), ((2,2,2),1)):
        tag = "".join(map(str, ori)) + str(cw)
        a.label(f"{name}_v{tag}")
        mainloop(tag, ori, cw)
        ep_common()
        for t in range(3): (ep_o1 if ori[t] == 1 else ep_o2)(t)
        a(f"s_branch {name}_rem")
    a.label(f"{name}_rem")
    ep_rem()
    a.stamp(4)
    if STAMPS: a("s_waitcnt vmcnt(0)")
    a.stamp(5)
    a.stamp_flush(6, S_W, 0)
    a.label(f"{name}_end")
    a("s_endpgm")
    return a.lines, 176
```

```python
from asmlib import *
from k1 import f32bits, MB, WS_BR, WS_V, WS_REM
import math
K2_LDS = 163840
BLK = 34816
L_KR = 4 * BLK
L_SCR = 2 * BLK
L_PHI = L_SCR
L_KVR = L_SCR + 20480
L_CMB = 0
L_KVS = 24576
WS_O = 16 * MB
WS_KVP = 24 * MB
LOG2E = math.log2(math.e)
U = 4

def gen_k2(name):
    a = Asm()
    S_H, S_QB, S_W, S_QG, S_KH = 24, 25, 26, 27, 28
    SRDW = "s[8:11]"
    SRDP = "s[12:15]"
    SRDD = "s[16:19]"
    QM0, QM1, QR, IDX = 10, 14, 18, 20
    AK, AR, AV = 21, 22, 23
    KM, KR, VA, VB = 24, 28, 32, 40
    O0, O1, SA, SB = 48, 64, 80, 112
    PQ = 144
    KVL = 160
    L16 = 1
    HF, L32 = 2, 3
    a(f"""
    s_cmp_ge_u32 s2, 256
    s_cbranch_scc1 {name}_end
    """)
    a.stamp(0)
    a(f"""
    s_load_dwordx2 s[12:13], s[0:1], 16
    s_load_dwordx4 s[4:7], s[0:1], 64
    v_lshrrev_b32 v1, 6, v0
    v_and_b32 v0, 63, v0
    s_and_b32 s{S_H}, s2, 7
    v_readfirstlane_b32 s{S_W}, v1
    s_lshl_b32 s{S_H}, s{S_H}, 2
    s_bfe_u32 s3, s2, {(2<<16)|3}
    s_or_b32 s{S_H}, s{S_H}, s3
    s_lshr_b32 s{S_QB}, s2, 5
    s_and_b32 s{S_QG}, s{S_W}, 3
    s_lshr_b32 s{S_KH}, s{S_W}, 2
    v_lshlrev_b32 v{L16}, 4, v0
    v_lshrrev_b32 v{HF}, 5, v0
    v_and_b32 v{L32}, 31, v0
    s_mov_b32 s14, {32*648}
    s_mov_b32 s15, 0x20000
    s_mov_b32 s10, {32*MB}
    s_mov_b32 s11, 0x20000
    s_mov_b32 s18, 256
    s_mov_b32 s19, 0x20000
    s_mov_b32 s20, 0x3ffff
    s_mov_b32 s21, 0x3ffff
    s_lshl_b32 s30, s{S_QB}, 3
    s_add_u32 s29, s30, s{S_W}
    s_lshl_b32 s31, s{S_H}, 6
    s_add_u32 s32, s31, s29
    s_lshl_b32 s33, s32, 10
    s_add_u32 s34, s33, {2*MB}
    s_mul_i32 s35, s32, 1152
    s_add_u32 s35, s35, {WS_V}
    s_lshl_b32 s36, s32, 7
    s_add_u32 s36, s36, {WS_REM}
    s_add_u32 s37, s36, {256*1024}
    v_lshlrev_b32 v4, 2, v{L32}
    v_mul_u32_u24 v5, 288, v{HF}
    v_lshl_add_u32 v5, v{L32}, 4, v5
    v_cmp_eq_u32 vcc, 18, v{L32}
    v_mov_b32 v6, 0x3f803f80
    s_waitcnt lgkmcnt(0)
    s_mov_b32 s8, s6
    s_mov_b32 s9, s7
    s_mov_b32 s16, s4
    s_mov_b32 s17, s5
    v_cndmask_b32 v6, 0, v6, vcc
    """)
    XK, XKR, XQ, XQR = 80, 84, 86, 90
    AVF = 92
    WM, WR = 100, 104
    WT = 106
    for r in range(8): a(f"v_mov_b32 v{AVF+r}, v6")
    a(f"""
    buffer_load_dwordx4 {vr(XK,4)}, v{L16}, {SRDW}, s34 offen
    buffer_load_dword v{XKR}, v4, {SRDW}, s37 offen
    s_mov_b64 exec, s[20:21]
    buffer_load_dwordx4 {vr(AVF,4)}, v5, {SRDW}, s35 offen
    buffer_load_dwordx4 {vr(AVF+4,4)}, v5, {SRDW}, s35 offen offset:576
    s_mov_b64 exec, -1
    buffer_load_dwordx4 {vr(XQ,4)}, v{L16}, {SRDW}, s33 offen
    buffer_load_dword v{XQR}, v4, {SRDW}, s36 offen
    s_and_b32 s30, s{S_H}, 1
    s_mul_i32 s38, s30, 72
    s_mul_i32 s39, s{S_H}, 648
    s_add_u32 s38, s38, s39
    s_cmp_eq_u32 s30, 0
    s_cselect_b32 s30, {16*36}, 0
    s_add_u32 s39, s39, s30
    v_mov_b32 v7, 0x7fffff00
    v_cmp_eq_u32 vcc, 20, v{L32}
    v_lshlrev_b32 v8, 1, v{L32}
    v_mul_u32_u24 v9, 144, v{HF}
    v_cndmask_b32 v7, v7, 34, vcc
    v_cmp_ge_u32 vcc, 16, v{L32}
    v_mov_b32 v{XKR+1}, 0
    v_mov_b32 v{XQR+1}, 0
    v_cndmask_b32 v7, v7, v8, vcc
    v_add_u32 v8, v7, v9
    v_lshl_add_u32 v7, v{HF}, 30, v7
    """)
    for t in range(8): a(f"buffer_load_ushort v{WT+t}, v8, {SRDP}, s38 offen offset:{(8*(t//4)+t%4)*36}")
    for t in range(2): a(f"buffer_load_ushort v{WT+8+t}, v7, {SRDP}, s39 offen offset:{36*t}")
    a(f"""
    s_lshl_b32 s30, s{S_QB}, 3
    s_lshl_b32 s40, s{S_QG}, 1
    s_add_u32 s40, s40, s30
    s_add_u32 s30, s31, s40
    s_lshl_b32 s41, s30, 10
    s_add_u32 s41, s41, {WS_BR}
    s_lshl_b32 s42, s30, 7
    s_add_u32 s42, s42, {WS_BR + WS_REM}
    v_lshlrev_b32 v9, 2, v0
    buffer_load_dwordx4 {vr(QM0,4)}, v{L16}, {SRDW}, s41 offen
    buffer_load_dwordx4 {vr(QM1,4)}, v{L16}, {SRDW}, s41 offen offset:1024
    buffer_load_dword v{QR}, v9, {SRDW}, s42 offen
    s_lshl_b32 s43, s{S_H}, 16
    s_add_u32 s43, s43, {WS_BR + 2*MB}  ; Km(h)
    s_mul_i32 s44, s{S_H}, 73728
    s_add_u32 s44, s44, {WS_BR + WS_V}  ; V(h)
    s_lshl_b32 s45, s{S_H}, 13
    s_add_u32 s45, s45, {WS_BR + WS_REM + 256*1024}  ; Kr(h)
    """)
    def dma_group(ph):
        for m in range(4):
            kh = m >> 1
            a(f"""
            s_add_u32 s30, s{S_W}, {8*(m&1)}
            s_lshl_b32 s30, s30, 10
            s_add_u32 m0, s30, {(2*ph+kh)*BLK}
            s_add_u32 s30, s30, {(kh*32+16*ph)*1024}
            s_add_u32 s30, s30, s43
            buffer_load_dwordx4 v{L16}, {SRDW}, s30 offen lds
            """)
        for m in range(5):
            a(f"s_add_u32 s30, s{S_W}, {8*m}")
            if m == 4: a("s_cmp_ge_u32 s30, 36\ns_cselect_b32 s46, 8, 0\ns_sub_u32 s30, s30, s46")
            a(f"""
            s_cmp_ge_u32 s30, 18
            s_cselect_b32 s46, {BLK - 18*1024}, 0
            s_cselect_b32 s47, {32*1152 - 18*1024}, 0
            s_lshl_b32 s30, s30, 10
            s_add_u32 s46, s46, s30
            s_add_u32 m0, s46, {2*ph*BLK + 16384}
            s_add_u32 s30, s30, s47
            s_add_u32 s30, s30, s44
            s_add_u32 s30, s30, {16*ph*1152}
            buffer_load_dwordx4 v{L16}, {SRDW}, s30 offen lds
            """)
        if ph == 0:
            a(f"""
            s_lshl_b32 s30, s{S_W}, 10
            s_add_u32 m0, s30, {L_KR}
            s_add_u32 s30, s30, s45
            buffer_load_dwordx4 v{L16}, {SRDW}, s30 offen lds
            """)
    dma_group(0)
    a.stamp(1)
    P = 116; T = 132; E1 = 160; E2 = 170
    a(f"""
    s_mov_b32 s48, {f32bits(LOG2E)}
    s_waitcnt vmcnt(13)
    """)
    for r in range(4): a(f"v_lshl_or_b32 v{WM+r}, v{WT+2*r+1}, 16, v{WT+2*r}")
    a(f"v_lshl_or_b32 v{WR}, v{WT+9}, 16, v{WT+8}\nv_mov_b32 v{WR+1}, 0")
    a.stamp(2)
    def features(xm, xr, dst):
        a.nop(2)
        a(f"v_mfma_f32_32x32x16_bf16 {vr(P,16)}, {vr(WM,4)}, {vr(xm,4)}, 0")
        a(f"v_mfma_f32_32x32x8_bf16 {vr(P,16)}, {vr(WR,2)}, {vr(xr,2)}, {vr(P,16)}")
        a.nop(12)
        for op, t in (("max", T), ("min", T+2)):
            a(f"""
            v_{op}3_f32 v{t}, v{P}, v{P+1}, v{P+2}
            v_{op}3_f32 v{t}, v{t}, v{P+3}, v{P+4}
            v_{op}3_f32 v{t}, v{t}, v{P+5}, v{P+6}
            v_{op}3_f32 v{t}, v{t}, v{P+7}, v{P+8}
            v_mov_b32 v{t+1}, v{t}
            """)
        a(f"""
        s_nop 1
        v_permlane32_swap_b32 v{T}, v{T+1}
        v_permlane32_swap_b32 v{T+2}, v{T+3}
        v_max_f32 v{T}, v{T}, v{T+1}
        v_min_f32 v{T+2}, v{T+2}, v{T+3}
        v_mul_f32 v{T}, s48, v{T}
        v_mul_f32 v{T+2}, s48, v{T+2}
        """)
        for r in range(9): a(f"v_fma_f32 v{E1+r}, v{P+r}, s48, -v{T}")
        for r in range(9): a(f"v_fma_f32 v{E2+r}, -v{P+r}, s48, v{T+2}")
        for r in range(9): a(f"v_exp_f32 v{E1+r}, v{E1+r}")
        for r in range(9): a(f"v_exp_f32 v{E2+r}, v{E2+r}")
        for e, t in ((E1, T), (E2, T+2)):
            a(f"v_add_f32 v{t}, v{e}, v{e+1}")
            for r in range(2, 9): a(f"v_add_f32 v{t}, v{t}, v{e+r}")
            a(f"v_mov_b32 v{t+1}, v{t}")
        a(f"""
        s_nop 1
        v_permlane32_swap_b32 v{T}, v{T+1}
        v_permlane32_swap_b32 v{T+2}, v{T+3}
        v_add_f32 v{T}, v{T}, v{T+1}
        v_add_f32 v{T+2}, v{T+2}, v{T+3}
        v_rcp_f32 v{T}, v{T}
        v_rcp_f32 v{T+2}, v{T+2}
        s_nop 0
        """)
        for r in range(9): a(f"v_mul_f32 v{E1+r}, v{E1+r}, v{T}")
        for r in range(9): a(f"v_mul_f32 v{E2+r}, v{E2+r}, v{T+2}")
        for r in range(4): a(f"v_cvt_pk_bf16_f32 v{dst+r}, v{E1+2*r}, v{E1+2*r+1}")
        for r in range(4): a(f"v_cvt_pk_bf16_f32 v{dst+4+r}, v{E2+2*r}, v{E2+2*r+1}")
        a(f"v_cvt_pk_bf16_f32 v{dst+8}, v{E1+8}, v{E2+8}\nv_mov_b32 v{dst+9}, 0")
    PK = 180
    features(XK, XKR, PK)
    a(f"""
    v_and_b32 v7, 16, v{L32}
    v_and_b32 v8, 3, v{L32}
    v_lshl_add_u32 v7, v8, 2, v7
    v_bfe_u32 v8, v{L32}, 2, 2
    v_add_u32 v7, v7, v8
    v_mul_u32_u24 v7, 80, v7
    v_lshl_add_u32 v7, v{HF}, 3, v7
    s_mul_i32 s30, s{S_W}, 2560
    s_add_u32 s30, s30, {L_PHI}
    v_add_u32 v7, s30, v7
    ds_write_b64 v7, {vr(PK,2)}
    ds_write_b64 v7, {vr(PK+2,2)} offset:16
    ds_write_b64 v7, {vr(PK+4,2)} offset:32
    ds_write_b64 v7, {vr(PK+6,2)} offset:48
    ds_write_b64 v7, {vr(PK+8,2)} offset:64
    v_bfe_u32 v8, v0, 2, 2
    v_lshlrev_b32 v8, 1, v8
    v_add_u32 v8, v8, v{HF}
    v_mul_u32_u24 v8, 160, v8            ; (4r + 2hf)*80
    v_add_u32 v8, s30, v8
    v_and_b32 v9, 1, v0
    v_lshl_add_u32 v9, v9, 3, v8
    v_and_b32 v4, 3, v0
    v_lshl_add_u32 v8, v4, 3, v8
    v_bfe_u32 v4, v0, 4, 1
    v_lshl_add_u32 v8, v4, 5, v8
    s_waitcnt lgkmcnt(0)
    """)
    FA = 190
    for sub in range(2):
        for t in range(2):
            a(f"ds_read_b64_tr_b16 {vr(FA+8*sub+2*t,2)}, v8 offset:{sub*1280+t*80}")
            a(f"ds_read_b64_tr_b16 {vr(FA+8*sub+4+2*t,2)}, v9 offset:{sub*1280+t*80+64}")
    features(XQ, XQR, PQ)
    KV0, KV1 = 48, 64
    a(f"""
    s_waitcnt lgkmcnt(0)
    v_mfma_f32_32x32x16_bf16 {vr(KV0,16)}, {vr(FA,4)}, {vr(AVF,4)}, 0
    v_mfma_f32_32x32x16_bf16 {vr(KV1,16)}, {vr(FA+4,4)}, {vr(AVF,4)}, 0
    v_mfma_f32_32x32x16_bf16 {vr(KV0,16)}, {vr(FA+8,4)}, {vr(AVF+4,4)}, {vr(KV0,16)}
    v_mfma_f32_32x32x16_bf16 {vr(KV1,16)}, {vr(FA+12,4)}, {vr(AVF+4,4)}, {vr(KV1,16)}
    v_mul_u32_u24 v7, 80, v0
    s_mul_i32 s30, s{S_W}, 5120
    s_add_u32 s30, s30, {L_KVR}
    v_add_u32 v7, s30, v7
    s_lshl_b32 s30, s{S_W}, 10
    v_add_u32 v8, s30, v{L16}            ; thread*16
    s_nop 8
    """)
    for q in range(5): a(f"ds_write_b128 v7, {vr(KV0+4*q,4)} offset:{16*q}")
    a(f"""
    s_lshl_b32 s49, s{S_H}, 3
    s_add_u32 s30, s49, s{S_QB}
    s_mul_i32 s30, s30, 5120
    s_add_u32 s50, s30, {WS_KVP}
    s_mul_i32 s49, s49, 5120
    s_add_u32 s49, s49, {WS_KVP}
    s_waitcnt lgkmcnt(0)
    s_barrier
    s_cmp_ge_u32 s{S_W}, 5
    s_cbranch_scc1 {name}_nored
    v_add_u32 v7, {L_KVR}, v8
    """)
    for w in range(8): a(f"ds_read_b128 {vr(KVL+4*w,4)}, v7 offset:{5120*w}")
    a("s_waitcnt lgkmcnt(0)")
    def sum8():
        for w in range(1, 8):
            for r in range(4): a(f"v_add_f32 v{KVL+r}, v{KVL+r}, v{KVL+4*w+r}")
    sum8()
    a(f"buffer_store_dwordx4 {vr(KVL,4)}, v8, {SRDW}, s50 offen sc1")
    a.label(f"{name}_nored")
    for r in range(32): a(f"v_mov_b32 v{O0+r}, 0")
    for r in range(8): a(f"v_mov_b32 v{SB+24+r}, 0")
    for r in range(16): a(f"v_mov_b32 v{VA+r}, v6")
    a(f"""
    v_mov_b32 v{IDX}, 0xdddd
    v_mov_b32 v{QR+1}, 0
    v_mov_b32 v{KR+1}, 0
    s_mul_i32 s30, s{S_KH}, {BLK}
    v_add_u32 v{AK}, s30, v{L16}
    s_add_u32 s30, s30, 16384
    v_add_u32 v{AV}, s30, v5
    s_lshl_b32 s30, s{S_KH}, 12
    s_add_u32 s30, s30, {L_KR}
    v_lshl_add_u32 v{AR}, v{L32}, 2, s30
    s_lshl_b32 s51, s{S_H}, 2
    v_mov_b32 v9, 1
    v_mov_b32 v7, 0
    """)
    a.stamp(3)
    a(f"""
    s_waitcnt vmcnt(0)
    s_barrier
    s_cmp_lg_u32 s{S_W}, 0
    s_cbranch_scc1 {name}_nosig
    s_mov_b64 exec, 1
    buffer_atomic_add v9, v7, {SRDD}, s51 offen
    s_mov_b64 exec, -1
    """)
    a.label(f"{name}_nosig")
    a.stamp(4)
    def rdK(u): return [f"ds_read_b128 {vr(KM,4)}, v{AK} offset:{1024*u}", f"ds_read_b32 v{KR}, v{AR} offset:{128*u}"]
    def rdV(u, buf): return ["s_mov_b64 exec, s[20:21]", f"ds_read_b128 {vr(buf,4)}, v{AV} offset:{1152*u}", f"ds_read_b128 {vr(buf+4,4)}, v{AV} offset:{1152*u+576}", "s_mov_b64 exec, -1"]
    for l in rdK(0) + rdV(0, VA): a(l)
    dma_group(1)
    a(f"""
    s_waitcnt lgkmcnt(0)
    v_mfma_f32_32x32x16_bf16 {vr(SA,16)}, {vr(KM,4)}, {vr(QM0,4)}, 0
    v_mfma_f32_32x32x16_bf16 {vr(SA+16,16)}, {vr(KM,4)}, {vr(QM1,4)}, 0
    s_nop 9
    v_mfma_f32_32x32x4_2b_bf16 {vr(SA,32)}, {vr(KR,2)}, {vr(QR,2)}, {vr(SA,32)}
    """)
    for l in rdK(1): a(l)
    a(f"s_mov_b32 s52, 0\ns_mov_b32 s60, {U*1024}\ns_mov_b32 s61, {U*1152}\ns_nop 15")
    a(".p2align 6")
    a.label(f"{name}_loop")
    NP = 32 // U
    for u in range(U):
        X, Y = (SA, SB) if u % 2 == 0 else (SB, SA)
        Vc, Vn = (VA, VB) if u % 2 == 0 else (VB, VA)
        def ex(i0, i1):
            for i in range(i0, i1): a(f"v_exp_f32 v{X+i}, v{X+i}")
        def smf(o, v, s): a(f"v_smfmac_f32_32x32x32_bf16 {vr(o,16)}, {vr(v,4)}, {vr(s,8)}, v{IDX}")
        a("s_waitcnt lgkmcnt(0)")
        a(f"v_mfma_f32_32x32x16_bf16 {vr(Y,16)}, {vr(KM,4)}, {vr(QM0,4)}, 0")
        ex(0, 4)
        smf(O1, Vn+4, Y+24)
        ex(4, 8)
        a(f"v_mfma_f32_32x32x16_bf16 {vr(Y+16,16)}, {vr(KM,4)}, {vr(QM1,4)}, 0")
        ex(8, 12)
        smf(O0, Vc, X)
        ex(12, 16)
        if u == U-2:
            a(f"s_cmp_eq_u32 s52, {NP//2-1}")
        elif u == U-1:
            a(f"v_add_u32 v{AV}, s54, v{AV}")
        else: a("s_nop 0")
        a(f"v_mfma_f32_32x32x4_2b_bf16 {vr(Y,32)}, {vr(KR,2)}, {vr(QR,2)}, {vr(Y,32)}")
        if u == U-2:
            a(f"""
            s_cselect_b32 s53, {2*BLK - (16-U)*1024}, s60
            s_cselect_b32 s54, {2*BLK - (16-U)*1152}, s61
            s_cbranch_scc1 {name}_mid
            """)
            a.label(f"{name}_midret")
            for l in rdV((u+1) % U, Vn): a(l)
            a(f"v_add_u32 v{AK}, s53, v{AK}\nv_add_u32 v{AR}, {U*128}, v{AR}")
            for l in rdK((u+2) % U): a(l)
        else:
            for l in rdV((u+1) % U, Vn) + rdK((u+2) % U): a(l)
        ex(16, 24)
        smf(O0, Vc+4, X+8)
        ex(24, 28)
        smf(O1, Vc, X+16)
        if u == U-1: a(f"s_add_u32 s52, s52, 1\ns_cmp_lt_u32 s52, {NP}")
        ex(28, 32)
    a(f"s_cbranch_scc1 {name}_loop")
    a(f"s_nop 1\nv_smfmac_f32_32x32x32_bf16 {vr(O1,16)}, {vr(VB+4,4)}, {vr(SB+24,8)}, v{IDX}")
    a.stamp(6)
    a(f"""
    s_cmp_ge_u32 s{S_W}, 5
    s_cbranch_scc1 {name}_nored2
    s_waitcnt vmcnt(0)
    """)
    sum8()
    a(f"v_add_u32 v7, {L_KVS}, v8\nds_write_b128 v7, {vr(KVL,4)}")
    a.label(f"{name}_nored2")
    a(f"""
    s_waitcnt lgkmcnt(0)
    v_mul_u32_u24 v7, 48, v0
    s_mul_i32 s30, s{S_W}, 3072
    v_add_u32 v9, s30, v7
    s_xor_b32 s30, s{S_W}, 4
    s_mul_i32 s30, s30, 3072
    v_add_u32 v7, s30, v7
    s_cmp_eq_u32 s{S_KH}, 0
    s_nop 7
    s_cbranch_scc1 {name}_kh0
    """)
    for q in range(3): a(f"ds_write_b128 v9, {vr(O0+4*q,4)} offset:{L_CMB+16*q}")
    for r in range(12): a(f"v_mov_b32 v{O0+r}, v{O1+r}")
    for r in range(4): a(f"v_mov_b32 v{QM0+r}, v{QM1+r}")
    a(f"s_branch {name}_cmb")
    a.label(f"{name}_kh0")
    for q in range(3): a(f"ds_write_b128 v9, {vr(O1+4*q,4)} offset:{L_CMB+16*q}")
    a.label(f"{name}_cmb")
    KA = 112
    a(f"""
    v_mul_u32_u24 v9, 80, v0
    s_waitcnt lgkmcnt(0)
    s_barrier
    """)
    for q in range(3): a(f"ds_read_b128 {vr(O1+4*q,4)}, v7 offset:{L_CMB+16*q}")
    for q in range(5): a(f"ds_read_b128 {vr(KA+4*q,4)}, v9 offset:{L_KVS+16*q}")
    a(f"""
    s_add_u32 s55, s40, s{S_KH}
    s_waitcnt lgkmcnt(5)
    """)
    for r in range(11): a(f"v_add_f32 v{O0+r}, v{O0+r}, v{O1+r}")
    a(f"""
    v_mov_b32 v{O1}, v{O0+10}
    v_add_f32 v{O1+2}, abs(v{O0}), abs(v{O0+1})
    """)
    for r in range(2, 10): a(f"v_add_f32 v{O1+2}, v{O1+2}, abs(v{O0+r})")
    a(f"""
    v_permlane32_swap_b32 v{O0+10}, v{O1}
    s_mov_b32 s30, {f32bits(2.0**-80)}
    s_mov_b32 s31, {f32bits(2.0**100)}
    s_mov_b32 s46, {f32bits(2.0**126)}
    v_cmp_le_f32 s[56:57], s30, v{O0+10}
    v_cmp_ge_f32 s[58:59], s31, v{O0+10}
    v_cmp_ge_f32 vcc, s46, v{O1+2}
    s_and_b64 s[56:57], s[56:57], s[58:59]
    s_and_b64 s[56:57], s[56:57], vcc
    s_cmp_eq_u64 s[56:57], -1
    s_cbranch_scc0 {name}_slow
    """)
    a.label(f"{name}_fin")
    def finalize(o, tile_s, br):
        a(f"""
        v_rcp_f32 v{o+11}, v{o+10}
        s_mul_i32 s30, s{tile_s}, 36
        s_add_u32 s31, s30, s{S_H}
        s_lshl_b32 s31, s31, 10
        s_add_u32 s31, s31, {WS_O + br*4*MB}
        """)
        for r in range(10): a(f"v_mul_f32 v{o+r}, v{o+r}, v{o+11}")
        for r in range(5): a(f"v_cvt_pk_bf16_f32 v{o+12+r}, v{o+2*r}, v{o+2*r+1}")
        a(f"""
        buffer_store_dwordx4 {vr(o+12,4)}, v{L16}, {SRDW}, s31 offen
        s_lshr_b32 s31, s{S_H}, 2
        s_lshl_b32 s31, s31, 9
        s_lshl_b32 s30, s30, 10
        s_add_u32 s30, s30, s31
        s_and_b32 s31, s{S_H}, 3
        s_lshl_b32 s31, s31, 2
        s_add_u32 s30, s30, s31
        s_add_u32 s30, s30, {WS_O + br*4*MB + 32*1024}
        s_mov_b32 exec_hi, 0
        buffer_store_dword v{o+16}, v{L16}, {SRDW}, s30 offen
        s_mov_b64 exec, -1
        """)
    finalize(O0, 55, 1)
    a.stamp(7)
    KP = 132; N = 80
    a("s_waitcnt lgkmcnt(0)")
    for r in range(9): a(f"v_cvt_pk_bf16_f32 v{KP+r}, v{KA+2*r}, v{KA+2*r+1}")
    a(f"""
    v_mov_b32 v{KP+9}, 0
    s_nop 1
    v_mfma_f32_32x32x16_bf16 {vr(N,16)}, {vr(KP,4)}, {vr(PQ,4)}, 0
    v_mfma_f32_32x32x16_bf16 {vr(N,16)}, {vr(KP+4,4)}, {vr(PQ+4,4)}, {vr(N,16)}
    v_mfma_f32_32x32x8_bf16 {vr(N,16)}, {vr(KP+8,2)}, {vr(PQ+8,2)}, {vr(N,16)}
    s_nop 11
    v_mov_b32 v{N+20}, v{N+10}
    s_nop 1
    v_permlane32_swap_b32 v{N+10}, v{N+20}
    v_add_f32 v{N+10}, {f32bits(1e-6)}, v{N+10}
    """)
    finalize(N, 29, 0)
    a.stamp(8)
    if STAMPS: a("s_waitcnt vmcnt(0)")
    a.stamp(9)
    a.stamp_flush(10, S_W, 1)
    a("s_endpgm")
    a.label(f"{name}_mid")
    a.stamp(5)
    a(f"""
    s_cmp_ge_u32 s{S_W}, 5
    s_cbranch_scc1 {name}_mid2
    """)
    a.label(f"{name}_poll")
    a(f"""
    buffer_load_dword v9, v7, {SRDD}, s51 offen sc1
    s_waitcnt vmcnt(0)
    v_readfirstlane_b32 s30, v9
    s_cmp_ge_u32 s30, 8
    s_cbranch_scc0 {name}_poll
    """)
    for j in range(8):
        a(f"buffer_load_dwordx4 {vr(KVL+4*j,4)}, v8, {SRDW}, s49 offen sc1\ns_add_u32 s49, s49, 5120")
    a(f"s_barrier\ns_branch {name}_midret")
    a.label(f"{name}_mid2")
    a(f"s_waitcnt vmcnt(0)\ns_barrier\ns_branch {name}_midret")
    a.label(f"{name}_slow")
    MX = 7
    a(f"""
    s_waitcnt lgkmcnt(0)
    s_lshl_b32 s30, s{S_KH}, 7
    s_add_u32 s30, s30, s42
    v_lshlrev_b32 v4, 2, v{L32}
    v_lshl_add_u32 v9, v{HF}, 30, v4
    buffer_load_dword v{QR}, v4, {SRDW}, s30 offen
    v_mov_b32 v{MX}, 0xff800000
    """)
    for r in range(16): a(f"v_mov_b32 v{O0+r}, 0")
    def qk_tile(withv):
        a(f"""
        buffer_load_dwordx4 {vr(KM,4)}, v{L16}, {SRDW}, s56 offen
        buffer_load_dword v{KR}, v9, {SRDW}, s57 offen
        """)
        if withv: a(f"""
        s_mov_b64 exec, s[20:21]
        buffer_load_dwordx4 {vr(VA,4)}, v5, {SRDW}, s58 offen
        buffer_load_dwordx4 {vr(VA+4,4)}, v5, {SRDW}, s58 offen offset:576
        s_mov_b64 exec, -1
        """)
        a(f"""
        s_add_u32 s56, s56, 1024
        s_add_u32 s57, s57, 128
        s_add_u32 s58, s58, 1152
        s_waitcnt vmcnt(0)
        v_mfma_f32_32x32x16_bf16 {vr(SA,16)}, {vr(KM,4)}, {vr(QM0,4)}, 0
        v_mfma_f32_32x32x8_bf16 {vr(SA,16)}, {vr(KR,2)}, {vr(QR,2)}, {vr(SA,16)}
        s_nop 11
        """)
    for ps in range(2):
        a(f"s_mov_b32 s56, s43\ns_mov_b32 s57, s45\ns_mov_b32 s58, s44\ns_mov_b32 s59, 64")
        a.label(f"{name}_slow{ps}")
        qk_tile(ps == 1)
        if ps == 0:
            for r in range(0, 16, 2): a(f"v_max3_f32 v{MX}, v{MX}, v{SA+r}, v{SA+r+1}")
        else:
            for r in range(16): a(f"v_sub_f32 v{SA+r}, v{SA+r}, v{MX}")
            for r in range(16): a(f"v_exp_f32 v{SA+r}, v{SA+r}")
            a(f"""
            s_nop 1
            v_smfmac_f32_32x32x32_bf16 {vr(O0,16)}, {vr(VA,4)}, {vr(SA,8)}, v{IDX}
            v_smfmac_f32_32x32x32_bf16 {vr(O0,16)}, {vr(VA+4,4)}, {vr(SA+8,8)}, v{IDX}
            """)
        a(f"s_sub_u32 s59, s59, 1\ns_cmp_lg_u32 s59, 0\ns_nop 7\ns_cbranch_scc1 {name}_slow{ps}")
        if ps == 0:
            a(f"v_mov_b32 v4, v{MX}\ns_nop 1\nv_permlane32_swap_b32 v{MX}, v4\nv_max_f32 v{MX}, v{MX}, v4")
    a(f"""
    s_nop 7
    v_mov_b32 v{O1}, v{O0+10}
    s_nop 1
    v_permlane32_swap_b32 v{O0+10}, v{O1}
    s_branch {name}_fin
    """)
    a.label(f"{name}_end")
    a("s_endpgm")
    return a.lines, 208
```

```python
from asmlib import *
from k1 import MB, rho_v
from k2 import WS_O
K3_BLOCK = 512
K3_LDS = 576 * 192

def gen_k3(name):
    a = Asm()
    S_B, S_RB, S_CG, S_W = 24, 25, 26, 27
    a(f"""
    s_cmp_ge_u32 s2, 256
    s_cbranch_scc1 {name}_end
    """)
    a.stamp(0)
    a(f"""
    s_load_dwordx2 s[4:5], s[0:1], 24
    s_load_dwordx4 s[28:31], s[0:1], 48
    s_load_dwordx2 s[8:9], s[0:1], 72
    v_lshrrev_b32 v1, 6, v0
    v_and_b32 v0, 63, v0
    s_and_b32 s{S_B}, s2, 1
    v_readfirstlane_b32 s{S_W}, v1
    s_bfe_u32 s{S_RB}, s2, {(2<<16)|3}
    s_lshl_b32 s3, s2, 1
    s_and_b32 s3, s3, 12
    s_or_b32 s{S_RB}, s{S_RB}, s3
    s_lshr_b32 s{S_CG}, s2, 5
    s_mov_b32 s10, {32*MB}
    s_mov_b32 s11, 0x20000
    s_mov_b32 s14, {576*1152}
    s_mov_b32 s15, 0x20000
    s_mov_b32 s18, {2048*2304}
    s_mov_b32 s19, 0x20000
    s_cmp_ge_u32 s{S_W}, 4
    s_cbranch_scc0 {name}_compute
    """)
    for q in range(192): assert (q * 5462) >> 16 == q // 12
    for p in range(3):
        a(f"""
        v_add_u32 v2, {64*p}, v0
        v_mul_u32_u24 v3, 5462, v2
        v_lshrrev_b32 v3, 16, v3            ; pos
        v_mul_u32_u24 v4, 12, v3
        v_sub_u32 v4, v2, v4                ; piece
        v_cmp_gt_u32 vcc, 9, v4
        v_lshlrev_b32 v4, 4, v4
        v_mov_b32 v5, 0x7fff0000
        v_cndmask_b32 v4, v5, v4, vcc
        v_and_b32 v5, 3, v3                 ; r
        v_bfe_u32 v6, v3, 2, 1              ; t
        v_lshrrev_b32 v7, 3, v3             ; hf
        v_lshl_add_u32 v8, v6, 3, v5
        v_lshl_add_u32 v8, v7, 2, v8        ; d = 8t + 4hf + r
        v_mul_u32_u24 v8, 1152, v8
        v_add_u32 v{10+p}, v8, v4
        v_lshlrev_b32 v8, 1, v6
        v_lshl_add_u32 v8, v7, 2, v8
        v_lshrrev_b32 v9, 1, v5
        v_add_u32 v8, v8, v9
        v_mul_u32_u24 v8, 18, v8
        v_xor_b32 v9, 1, v9
        v_lshl_add_u32 v8, v9, 4, v8
        v_and_b32 v5, 1, v5
        v_add_u32 v8, v8, v5
        v_mul_u32_u24 v8, 1152, v8
        v_add_u32 v{13+p}, v8, v4
        """)
    a(f"""
    s_sub_u32 s32, s{S_W}, 4
    s_mul_i32 s33, s32, {18*1152}
    s_and_b32 s34, s32, 1
    s_mul_i32 s34, s34, {2*1152}
    s_add_u32 s33, s33, s34
    s_mul_i32 s34, s{S_CG}, 144
    s_add_u32 s33, s33, s34
    s_mul_i32 s35, s32, {8*18*1152}
    s_add_u32 s35, s35, s34
    s_mul_i32 s36, s32, 3072
    s_cmp_eq_u32 s{S_B}, 0
    s_waitcnt lgkmcnt(0)
    s_cselect_b32 s12, s4, s28
    s_cselect_b32 s13, s5, s29
    """)
    def lissue(c):
        for p in range(3):
            a(f"s_add_u32 m0, s36, {c*12288 + p*1024}")
            if c < 8:
                a(f"s_add_u32 s37, s33, {c*4*18*1152}" if p == 0 else "s_nop 0")
                a(f"buffer_load_dwordx4 v{10+p}, s[12:15], s37 offen lds")
            else:
                a(f"s_nop 0\nbuffer_load_dwordx4 v{13+p}, s[12:15], s35 offen lds")
    PF = 4
    a.stamp(1)
    for c in range(PF): lissue(c)
    for c in range(9):
        issued = min(9, PF + c)
        a(f"s_waitcnt vmcnt({3*(issued - c - 1)})\ns_barrier")
        if c == 0: a.stamp(2)
        if PF + c < 9: lissue(PF + c)
    a.stamp(3)
    a.stamp_flush(4, S_W, 2)
    a("s_endpgm")
    a.label(f"{name}_compute")
    ACC = 16; WF = 64; OF = 88
    a(f"""
    v_lshlrev_b32 v1, 4, v0
    s_lshl_b32 s32, s{S_RB}, 2
    s_add_u32 s32, s32, s{S_W}
    s_mul_i32 s33, s32, {36*1024}
    s_lshl_b32 s34, s{S_B}, 22
    s_add_u32 s33, s33, s34
    s_add_u32 s33, s33, {WS_O}
    s_waitcnt lgkmcnt(0)
    s_mov_b32 s16, s30
    s_mov_b32 s17, s31
    """)
    def oload(s):
        if s % 4 == 0 and s: a("s_add_u32 s33, s33, 4096")
        a(f"buffer_load_dwordx4 {vr(OF+4*s,4)}, v1, s[8:11], s33 offen offset:{1024*(s%4)}")
    OP = 12
    for s in range(OP): oload(s)
    a(f"""
    v_lshrrev_b32 v2, 5, v0
    v_bfe_u32 v3, v0, 2, 2
    v_lshl_add_u32 v3, v2, 3, v3
    v_mul_u32_u24 v3, 192, v3
    v_and_b32 v4, 3, v0
    v_lshl_add_u32 v3, v4, 3, v3
    v_bfe_u32 v4, v0, 4, 1
    v_lshl_add_u32 v3, v4, 5, v3
    v_add_u32 v4, {18*3072}, v3
    v_and_b32 v5, 31, v0
    """)
    rho_v(a, "v6", "v5", "v7")
    a(f"""
    s_lshl_b32 s34, s32, 5
    v_add_u32 v6, s34, v6
    v_mul_u32_u24 v6, 2304, v6
    s_mul_i32 s35, s{S_B}, 1152
    s_mul_i32 s36, s{S_CG}, 144
    s_add_u32 s35, s35, s36
    v_lshl_add_u32 v7, v2, 3, v6
    v_lshl_add_u32 v6, v2, 4, v6
    """)
    def wreads(s):
        b = WF + 12*(s & 1)
        base, off = ("v3", s*3072) if s < 18 else ("v4", (s-18)*3072)
        return [f"ds_read_b64_tr_b16 {vr(b+4*ct+2*t,2)}, {base} offset:{off + ct*64 + t*768}" for ct in range(3) for t in range(2)]
    a.stamp(1)
    a("s_barrier")
    a.stamp(2)
    for l in wreads(0): a(l)
    nissued = OP
    for s in range(36):
        nxt = wreads(s+1) if s < 35 else []
        b = WF + 12*(s & 1)
        a(f"s_waitcnt vmcnt({nissued - s - 1}) lgkmcnt(0)")
        for ct in range(3):
            d = vr(ACC+16*ct, 16)
            a(f"v_mfma_f32_32x32x16_bf16 {d}, {vr(b+4*ct,4)}, {vr(OF+4*s,4)}, {d if s else 0}")
            if ct == 0:
                if s % 4 == 3 and s < 35: a("s_barrier")
                for l in nxt[:3]: a(l)
            if ct == 1:
                for l in nxt[3:]: a(l)
            if ct == 2 and nissued < 36:
                oload(nissued); nissued += 1
    a.stamp(3)
    a.nop(10)
    T = WF
    for ct in range(2):
        for jp in range(2):
            d = ACC + 16*ct + 8*jp; o = T + 4*(2*ct+jp)
            for r in range(4): a(f"v_cvt_pk_bf16_f32 v{o+r}, v{d+2*r}, v{d+2*r+1}")
            a(f"""
            s_nop 1
            v_permlane32_swap_b32 v{o}, v{o+2}
            v_permlane32_swap_b32 v{o+1}, v{o+3}
            buffer_store_dwordx4 {vr(o,4)}, v6, s[16:19], s35 offen offset:{64*ct+32*jp}
            """)
    d = ACC + 32; o = T + 16
    a(f"""
    v_cvt_pk_bf16_f32 v{o}, v{d}, v{d+1}
    v_cvt_pk_bf16_f32 v{o+1}, v{d+2}, v{d+3}
    buffer_store_dwordx2 {vr(o,2)}, v7, s[16:19], s35 offen offset:128
    """)
    a.stamp(4)
    if STAMPS: a("s_waitcnt vmcnt(0)")
    a.stamp(5)
    a.stamp_flush(6, S_W, 2)
    a.label(f"{name}_end")
    a("s_endpgm")
    return a.lines, 232
```

```python
import sys
from asmlib import *
import k1
NAME = "concat_heads__linear_kernel_hedgehog__softmax_full_mha__prompt"
def build(parts):
    hdr = open("cdna_kernels/" + NAME + ".s.ref").read().split("; Override launch")[0]
    s = hdr
    for (n, grid, block, lds, _) in parts: s += f"; @launch kernel={n} grid=({grid},1,1) block=({block},1,1) lds={lds}\n"
    s += '.amdgcn_target "amdgcn-amd-amdhsa--gfx950"\n'
    nerr = 0
    for (n, grid, block, lds, g) in parts:
        lines, nv = g(n)
        code, e = kernel_text(n, lines, nv); nerr += e
        s += code
    return s, nerr
if __name__ == "__main__":
    parts = [("gemm_in_kernel", 256, 512, k1.K1_LDS, k1.gen_k1)]
    try:
        import k2; parts.append(("attn_kernel", 256, 512, k2.K2_LDS, k2.gen_k2))
        import k3; parts.append(("gemm_out_kernel", 256, k3.K3_BLOCK, k3.K3_LDS, k3.gen_k3))
    except ImportError as e: print("partial build", e)
    s, nerr = build(parts)
    out = sys.argv[1] if len(sys.argv) > 1 else "cur.s"
    open(out, "w").write(s)
    print("wrote", out, len(s), "bytes; check errors:", nerr)
```

```python
import re, sys, os
STAMPS = int(os.environ.get('STAMPS','0'))
ABL = os.environ.get('ABL','')

class Asm:
    def __init__(self):
        self.lines = []
        self.uid = 0
    def __call__(self, s):
        for l in s.split("\n"):
            l = l.rstrip()
            if 'noload' in ABL and l.strip().endswith(' lds'): continue
            if 'nomfma' in ABL and 'v_mfma' in l: continue
            if 'noread' in ABL and 'ds_read' in l: continue
            if l.strip(): self.lines.append(l if l.endswith(":") or l.startswith(".") or l.startswith(";") else "  " + l.strip())
    def label(self, n): self.lines.append(n + ":")
    def newlabel(self, p="L"):
        self.uid += 1
        return f"{p}_{self.uid}"
    def nop(self, n):
        while n > 0:
            k = min(n, 16); self(f"s_nop {k-1}"); n -= k
    def stamp(self, i):
        if STAMPS: self(f"{'s_memtime' if STAMPS == 2 else 's_memrealtime'} s[{70+2*i}:{71+2*i}]")
    def stamp_flush(self, n, wave_sgpr, kidx, nwaves=8):
        if not STAMPS: return
        self(f"""
        s_load_dwordx2 s[56:57], s[0:1], 72
        s_mov_b64 exec, -1
        s_waitcnt lgkmcnt(0)
        s_add_u32 s56, s56, {(128 + kidx) << 20}
        s_addc_u32 s57, s57, 0
        s_mov_b32 s58, 0x100000
        s_mov_b32 s59, 0x20000
        s_mul_i32 s60, s2, {nwaves}
        s_add_u32 s60, s60, s{wave_sgpr}
        s_lshl_b32 s60, s60, 6
        v_mov_b32 v1, 0
        """)
        for i in range(n):
            self(f"v_mov_b32 v2, s{70+2*i}\nbuffer_store_dword v2, v1, s[56:59], s60 offen offset:{4*i}\ns_nop 1")
    def text(self): return "\n".join(self.lines) + "\n"

def vr(a, n=1): return f"v{a}" if n == 1 else f"v[{a}:{a+n-1}]"
def sr(a, n=1): return f"s{a}" if n == 1 else f"s[{a}:{a+n-1}]"

REG = re.compile(r"^(-|abs\(|\|)?([vas])(\d+|\[(\d+):(\d+)\])\)?\|?$")
def regs_of(op):
    op = op.strip()
    if op in ("vcc", "vcc_lo", "vcc_hi"): return {"vcc"}
    if op in ("exec", "exec_lo", "exec_hi"): return {"exec"}
    if op == "m0": return {"m0"}
    m = REG.match(op)
    if not m: return set()
    k = m.group(2)
    if m.group(4): return {f"{k}{i}" for i in range(int(m.group(4)), int(m.group(5)) + 1)}
    return {f"{k}{m.group(3)}"}

TRANS = ("v_exp_f32", "v_log_f32", "v_rcp_f32", "v_rsq_f32", "v_sqrt_f32", "v_sin_f32", "v_cos_f32", "v_exp_f16", "v_rcp_iflag_f32")
def passes(mn):
    if "32x32x4_2b" in mn: return 16
    if "32x32" in mn: return 8
    if "16x16x4_4b" in mn: return 8
    if "16x16" in mn: return 4
    if "4x4" in mn: return 2
    raise ValueError(mn)

class Ins:
    def __init__(self, text, idx):
        self.text = text.strip(); self.idx = idx
        t = self.text.split(";")[0].strip()
        parts = t.split(None, 1)
        self.mn = parts[0]
        rest = parts[1] if len(parts) > 1 else ""
        toks = [x.strip() for x in re.split(r",(?![^\[]*\])", rest)] if rest else []
        ops = []
        self.mods = ""
        for i, x in enumerate(toks):
            if i == len(toks) - 1:
                p = x.split(None, 1)
                ops.append(p[0]); self.mods = p[1] if len(p) > 1 else ""
            else: ops.append(x)
        self.ops = ops
        mn = self.mn
        for suf in ("_e32", "_e64", "_dpp", "_sdwa"):
            if mn.endswith(suf): mn = mn[:-len(suf)]
        self.base = mn
        self.dpp = self.mn.endswith("_dpp") or "quad_perm" in self.mods or "row_" in self.mods
        self.defs = set(); self.uses = set()
        self.kind = "other"; self.ws = 1
        R = [regs_of(o) for o in ops]
        self.srcA = self.srcB = self.srcC = set()
        self.storedata = set(); self.wide = False
        self.lds_dma = False
        if mn == "s_nop": self.kind = "nop"; self.ws = int(ops[0], 0) + 1
        elif mn.startswith("v_mfma"):
            self.kind = "mfma"; self.defs = R[0]; self.srcA, self.srcB, self.srcC = R[1], R[2], R[3]
            self.uses = R[1] | R[2] | R[3]; self.p = passes(mn)
        elif mn.startswith("v_smfmac"):
            self.kind = "mfma"; self.defs = R[0]; self.srcA = R[1]; self.srcB = R[2] | R[3]; self.srcC = R[0]
            self.uses = R[0] | R[1] | R[2] | R[3]; self.p = passes(mn)
        elif mn.startswith("v_"):
            self.kind = "valu"
            if mn.startswith("v_cmp"):
                self.defs = set(R[0]); self.uses = set().union(*R[1:])
                if mn.startswith("v_cmpx"): self.defs |= {"exec"}
            elif mn in ("v_permlane32_swap_b32", "v_permlane16_swap_b32"):
                self.defs = R[0] | R[1]; self.uses = R[0] | R[1]
            elif mn in ("v_add_co_u32", "v_sub_co_u32", "v_addc_co_u32", "v_subb_co_u32", "v_div_scale_f32"):
                self.defs = R[0] | R[1]; self.uses = set().union(*R[2:])
            elif mn == "v_nop": pass
            else:
                self.defs = set(R[0]); self.uses = set().union(*R[1:]) if len(R) > 1 else set()
                if mn in ("v_fmac_f32", "v_dot2c_f32_bf16", "v_writelane_b32") or "PRESERVE" in self.mods or self.dpp: self.uses |= R[0]
                if mn == "v_cndmask_b32" and len(ops) == 3: self.uses |= {"vcc"}
            self.uses |= {"exec"}
        elif mn.startswith("ds_"):
            self.kind = "ds"
            if mn.startswith("ds_read") or mn.startswith("ds_bpermute") or mn.startswith("ds_swizzle") or "_rtn" in mn:
                self.defs = R[0]; self.uses = set().union(*R[1:])
            else:
                self.uses = set().union(*R); self.storedata = set().union(*R[1:])
            self.uses |= {"exec"}
        elif mn.startswith("buffer_") or mn.startswith("global_"):
            self.kind = "vmem"
            mods = self.mods.split()
            if mn in ("buffer_wbl2", "buffer_inv"): pass
            elif "lds" in mods or "_lds_" in mn:
                self.lds_dma = True; self.uses = set().union(*R) | {"m0"}
            elif "load" in mn:
                self.defs = set(R[0]); self.uses = set().union(*R[1:])
                if "d16" in mn: self.uses |= R[0]
            elif "atomic" in mn:
                self.uses = set().union(*R)
                if "sc0" in mods: self.defs = set(R[0])
            else:
                self.uses = set().union(*R)
                self.storedata = R[0] if mn.startswith("buffer_") else R[1]
                self.wide = mn.endswith("x4") or mn.endswith("x3")
            self.uses |= {"exec"}
        elif mn.startswith("s_load") or mn.startswith("s_buffer_load") or mn in ("s_memtime", "s_memrealtime"):
            self.kind = "smem"; self.defs = R[0]; self.uses = set().union(*R[1:]) if len(R) > 1 else set()
        elif mn == "s_waitcnt": self.kind = "wait"
        elif mn.startswith("s_cbranch") or mn == "s_branch": self.kind = "branch"
        elif mn in ("s_barrier", "s_endpgm", "s_setprio", "s_sleep", "s_sethalt"): self.kind = "other"
        elif mn.startswith("s_"):
            self.kind = "salu"
            if mn.startswith("s_cmp") or mn.startswith("s_bitcmp"): self.uses = set().union(*R)
            else:
                self.defs = set(R[0]); self.uses = set().union(*R[1:]) if len(R) > 1 else set()
                if "saveexec" in mn: self.defs |= {"exec"}; self.uses |= {"exec"}
                if mn in ("s_addk_i32", "s_mulk_i32"): self.uses |= R[0]
        else:
            raise ValueError("unknown instr " + text)
        self.trans = self.base in TRANS

def parse(lines):
    ins = []; labels = {}
    for l in lines:
        s = l.split(";")[0].strip()
        if not s or s.startswith("."): continue
        if s.endswith(":"): labels[s[:-1]] = len(ins); continue
        ins.append(Ins(l, len(ins)))
    succ = []
    for i, x in enumerate(ins):
        if x.mn == "s_endpgm": succ.append([])
        elif x.mn == "s_branch": succ.append([labels[x.ops[0]]])
        elif x.kind == "branch": succ.append([i + 1, labels[x.ops[0]]])
        else: succ.append([i + 1] if i + 1 < len(ins) else [])
    pred = [[] for _ in ins]
    for i, ss in enumerate(succ):
        for s in ss:
            if s < len(ins): pred[s].append(i)
    return ins, succ, pred

def isv(s): return {r for r in s if r[0] in "va" and r not in ("vcc",)}
def iss(s): return {r for r in s if r[0] == "s" or r == "vcc"}

def need(p, c):
    n = 0
    XD = {2: 5, 4: 8, 8: 12, 16: 20}; XC = {2: 4, 4: 6, 8: 10, 16: 18}; XW = {2: 1, 4: 3, 8: 7, 16: 15}
    if p.kind == "valu":
        pv = isv(p.defs); ps = iss(p.defs)
        if c.kind == "mfma" and pv & c.uses: n = max(n, 2)
        if c.kind == "valu":
            if p.trans and not c.trans and pv & c.uses: n = max(n, 1)
            if c.dpp and pv & c.uses: n = max(n, 2)
            if c.base.startswith("v_permlane") and pv & c.uses: n = max(n, 2)
            if c.base in ("v_readfirstlane_b32", "v_readlane_b32") and pv & c.uses: n = max(n, 1)
            if ps & c.uses: n = max(n, 2)
            if c.base in ("v_readlane_b32", "v_writelane_b32") and ps & c.uses: n = max(n, 4)
            if ("op_sel" in p.mods or "dst_sel" in p.mods) and pv & (c.uses | c.defs): n = max(n, 1)
        if c.kind == "vmem" and ps & c.uses: n = max(n, 5)
        if c.kind in ("smem",) and ps & c.uses: n = max(n, 1)
        if "exec" in p.defs and c.kind in ("mfma", "valu"): n = max(n, 5)
    if p.kind == "mfma":
        d = p.defs
        if c.kind == "mfma":
            if d & (c.srcA | c.srcB): n = max(n, XD[p.p])
            if d & c.srcC and not (d == c.srcC and p.p == c.p): n = max(n, XC[p.p])
            if d & c.defs and not (d == c.defs and p.p == c.p) : n = max(n, XC[p.p])
        elif c.kind in ("valu", "ds", "vmem"):
            if d & (c.uses | c.defs): n = max(n, XD[p.p])
            if c.kind == "valu" and p.srcC & c.defs: n = max(n, XW[p.p])
    if p.kind == "salu" and "m0" in p.defs and c.lds_dma: n = max(n, 1)
    if p.kind == "vmem" and p.wide and p.storedata & c.defs: n = max(n, 2 if c.kind == "valu" else 1)
    return n

def check_hazards(lines, name=""):
    ins, succ, pred = parse(lines)
    errs = []
    MAXW = 20
    for c in ins:
        if c.kind in ("nop", "wait", "branch", "other"): continue
        stack = [(p, 0) for p in pred[c.idx]]
        seen = {}
        while stack:
            i, dist = stack.pop()
            if dist >= MAXW or seen.get(i, 99) <= dist: continue
            seen[i] = dist
            p = ins[i]
            n = need(p, c)
            if n > dist: errs.append(f"{name}: hazard need {n} have {dist}: [{p.idx}] {p.text}  ->  [{c.idx}] {c.text}")
            for q in pred[i]: stack.append((q, dist + p.ws))
    return errs

M32 = 0xffffffff
def _val(op, sv):
    op = op.strip()
    if re.fullmatch(r"s\d+", op): return sv.get(op)
    try: return int(op, 0) & M32
    except ValueError: return None
def salu_step(x, sv):
    mn, ops = x.mn, x.ops
    if x.kind == "valu" or x.kind == "smem":
        kill = [r for r in x.defs if r[0] == "s"]
        if any(r in sv for r in kill):
            sv = dict(sv)
            for r in kill:
                if not (mn == "v_readfirstlane_b32" and r in sv.get("pin", ())): sv.pop(r, None)
        return sv
    if x.kind != "salu": return sv
    sv = dict(sv)
    cmpf = {"s_cmp_eq_u32": lambda a, b: a == b, "s_cmp_lg_u32": lambda a, b: a != b, "s_cmp_ge_u32": lambda a, b: a >= b,
            "s_cmp_lt_u32": lambda a, b: a < b, "s_cmp_le_u32": lambda a, b: a <= b, "s_cmp_gt_u32": lambda a, b: a > b,
            "s_bitcmp1_b32": lambda a, b: (a >> (b & 31)) & 1 == 1}
    if mn in cmpf:
        a, b = _val(ops[0], sv), _val(ops[1], sv)
        if a is None or b is None: sv.pop("scc", None)
        else: sv["scc"] = int(cmpf[mn](a, b))
        return sv
    if mn.startswith("s_cmp") or mn.startswith("s_bitcmp"): sv.pop("scc", None); return sv
    d = ops[0]; res = None; scc = "keep"
    v = [_val(o, sv) for o in ops[1:]]
    ok = all(z is not None for z in v)
    if mn == "s_mov_b32": res = v[0]
    elif mn == "s_cselect_b32":
        c = sv.get("scc"); res = None if c is None else (v[0] if c else v[1])
    elif mn in ("s_mul_i32",): res = (v[0] * v[1]) & M32 if ok else None
    elif mn == "s_add_u32": res, scc = (((v[0] + v[1]) & M32, int(v[0] + v[1] > M32)) if ok else (None, None))
    elif mn == "s_sub_u32": res, scc = (((v[0] - v[1]) & M32, int(v[1] > v[0])) if ok else (None, None))
    elif mn in ("s_and_b32", "s_or_b32", "s_xor_b32", "s_lshl_b32", "s_lshr_b32"):
        if ok:
            res = {"s_and_b32": v[0] & v[1], "s_or_b32": v[0] | v[1], "s_xor_b32": v[0] ^ v[1], "s_lshl_b32": (v[0] << (v[1] & 31)) & M32, "s_lshr_b32": v[0] >> (v[1] & 31)}[mn]
            scc = int(res != 0)
        else: scc = None
    elif mn in ("s_mov_b64", "s_getpc_b64"): pass
    else: scc = None
    for r in x.defs: sv.pop(r, None)
    if res is not None and re.fullmatch(r"s\d+", d) and d in sv.get("track", ()): sv[d] = res
    if scc is None: sv.pop("scc", None)
    elif scc != "keep": sv["scc"] = scc
    return sv

def check_waits(lines, name="", init=None, track=()):
    ins, succ, pred = parse(lines)
    errs = set()
    seen = set()
    sv0 = dict(init or {}); sv0["pin"] = frozenset(sv0.keys()); sv0["track"] = frozenset(track)
    stack = [(0, (), (), (), sv0, 0)]
    steps = 0
    bars = set()
    while stack:
        pc, vm, lg, sm, sv, nb = stack.pop()
        while True:
            x = ins[pc]
            if len(pred[pc]) > 1 or pc == 0:
                key = (pc, vm, lg, sm, frozenset(sv.items()), nb)
                if key in seen: break
                seen.add(key)
            steps += 1
            if steps > 6000000: errs.add(name + ": wait check gave up"); return sorted(errs), bars
            touched = x.uses | x.defs
            pend = set()
            for q in vm: pend |= q
            for q in lg: pend |= q
            for q in sm: pend |= q
            bad = touched & pend
            if bad: errs.add(f"{name}: pending load regs {sorted(bad)[:4]} touched by [{x.idx}] {x.text}")
            if x.mn == "s_barrier": nb += 1
            if x.kind == "wait":
                t = x.text
                m = re.search(r"vmcnt\((\d+)\)", t)
                if m:
                    n = int(m.group(1)); vm = vm[len(vm) - n:] if n < len(vm) else vm
                    if n == 0: vm = ()
                m = re.search(r"lgkmcnt\((\d+)\)", t)
                if m:
                    n = int(m.group(1))
                    if n == 0: lg = (); sm = ()
                    elif not sm: lg = lg[len(lg) - n:] if n < len(lg) else lg
            elif x.kind == "vmem" and x.mn not in ("buffer_wbl2", "buffer_inv"): vm = (vm + (frozenset(x.defs),))[-64:]
            elif x.kind == "ds": lg = (lg + (frozenset(x.defs),))[-32:]
            elif x.kind == "smem": sm = sm + (frozenset(x.defs),)
            sv = salu_step(x, sv)
            ss = succ[pc]
            if x.mn in ("s_cbranch_scc0", "s_cbranch_scc1") and "scc" in sv:
                taken = sv["scc"] == (1 if x.mn.endswith("1") else 0)
                ss = [ss[1]] if taken else [ss[0]]
            if not ss:
                if x.idx != len(ins) - 1: bars.add(nb)
                break
            for s in ss[1:]: stack.append((s, vm, lg, sm, sv, nb))
            pc = ss[0]
    return sorted(errs), bars

def kernel_text(name, body_lines, nvgpr, nsgpr=96, accum=None, roles=None, track=()):
    accum = accum or ((nvgpr + 3) // 4 * 4)
    errs = check_hazards(body_lines, name[-12:])
    for r in (roles or [None]):
        e, bars = check_waits(body_lines, name[-12:] + str(r), r, track)
        errs += e
        if roles: print("role", r, "barrier counts at exit:", sorted(bars), file=sys.stderr)
    for e in errs[:40]: print("CHECK:", e, file=sys.stderr)
    if errs: print(f"CHECK: {len(errs)} problems in {name}", file=sys.stderr)
    code = f""".text
.globl {name}
.p2align 8
.type {name},@function
{name}:
""" + "\n".join(body_lines) + f"""
.section .rodata,"a"
.p2align 6
.amdhsa_kernel {name}
  .amdhsa_next_free_vgpr {nvgpr}
  .amdhsa_next_free_sgpr {nsgpr}
  .amdhsa_accum_offset {accum}
  .amdhsa_group_segment_fixed_size 0
  .amdhsa_kernarg_size 80
  .amdhsa_user_sgpr_count 2
  .amdhsa_user_sgpr_kernarg_segment_ptr 1
  .amdhsa_system_sgpr_workgroup_id_x 1
  .amdhsa_float_denorm_mode_32 3
.end_amdhsa_kernel
"""
    return code, len(errs)
```

```python
from asmlib import *
import math, struct, os
def f32bits(x): return struct.unpack("<I", struct.pack("<f", x))[0]
MB = 1 << 20
QSCALE = (18 ** -0.5) * math.log2(math.e)
LOG2E = math.log2(math.e)
WS_BR = 8 * MB; WS_V = 4 * MB; WS_REM = 6 * MB + MB // 2
WS_O = 16 * MB
WS_KVP = 24 * MB
WS_FL = 26 * MB
FGB, FGA, FKV, FOA, FOB, EPOCH = [WS_FL + i * 32768 for i in range(6)]
WS_SIZE = 27 * MB
L_KR = 0; L_SLOT = 8192; SLOT = 34816; KHB = 17408
L_FREE = 77824
G_STAGE = 30720; L_G = 163840 - 3 * G_STAGE
L_PAD = 43008; L_NONCE = 44032
L_ASCR = L_FREE
L_KVS = L_FREE + 40960
L_WOA = L_FREE
L_CMB = 9216
L_RED = L_FREE + 9216
LDS = 163840
SPIN = 1 << 22
OPT = dict(prefetch=1, remmask=1, prio=1)
for kv in os.environ.get("OPT", "").split(","):
    if "=" in kv: k, v = kv.split("="); OPT[k] = int(v)

def rho_v(a, dst, src, t1):
    a(f"""
    v_and_b32 {dst}, 19, {src}
    v_lshrrev_b32 {t1}, 1, {src}
    v_and_b32 {t1}, 4, {t1}
    v_or_b32 {dst}, {dst}, {t1}
    v_lshlrev_b32 {t1}, 1, {src}
    v_and_b32 {t1}, 8, {t1}
    v_or_b32 {dst}, {dst}, {t1}
    """)

def gen(name):
    a = Asm()
    N = name
    WS, SX, SW_, SD, SP = "s[4:7]", "s[8:11]", "s[12:15]", "s[16:19]", "s[20:23]"
    W, NON, NON2 = 24, 25, 26
    VM = "s[28:29]"
    RB, CG, H, QB = 30, 31, 32, 33
    BR = 34
    P_AX, P_AW, P_PHI, P_AWO, P_BX, P_BW, P_BWO, P_OUT, P_DBG, P_WS = 36, 38, 40, 42, 44, 46, 48, 50, 52, 54
    t0, t1, t2, t3, t4, t5 = 56, 57, 58, 59, 60, 61
    S_KM, S_V, S_KR, S_QT, S_QRO, S_AT = 62, 63, 64, 65, 66, 67
    L16, HF, L32 = 1, 8, 9
    QM0, QM1, QR, IDX, AK, AR, AV, WOP, PQ = 144, 148, 152, 154, 155, 156, 157, 158, 164
    VOFF = 174
    PL = 136

    def srd(dst, ptr, size):
        d = int(dst[2:dst.index(":")])
        a(f"s_mov_b32 s{d}, s{ptr}\ns_mov_b32 s{d+1}, s{ptr+1}\ns_mov_b32 s{d+2}, {size}\ns_mov_b32 s{d+3}, 0x20000")
    def div6(dst, src, add):
        a(f"s_add_u32 s{dst}, s{src}, {add}\ns_mul_i32 s{dst}, s{dst}, 43\ns_lshr_b32 s{dst}, s{dst}, 8")
    for x in range(96): assert (x * 43) >> 8 == x // 6
    def flag_store(soff):
        a(f"""
        v_mov_b32 v{PL}, s{NON}
        v_mov_b32 v{PL+1}, s{NON2}
        v_mov_b32 v{PL+2}, 0
        s_mov_b64 exec, 1
        buffer_store_dwordx2 {vr(PL,2)}, v{PL+2}, {WS}, s{soff} offen sc1
        s_mov_b64 exec, -1
        """)
    def poll_issue(): a(f"buffer_load_dwordx2 {vr(PL+2,2)}, v{PL+4}, {WS}, 0 offen sc1")
    def poll_check(vm):
        ok = a.newlabel(N + "_pok"); lp = a.newlabel(N + "_plp")
        a(f"s_waitcnt vmcnt({vm})\ns_mov_b32 s{t5}, {SPIN}")
        a.label(lp)
        a(f"""
        v_cmp_eq_u32 vcc, s{NON}, v{PL+2}
        v_cmp_eq_u32 s[94:95], s{NON2}, v{PL+3}
        s_and_b64 vcc, vcc, s[94:95]
        s_cmp_eq_u64 vcc, -1
        s_cbranch_scc1 {ok}
        s_sub_u32 s{t5}, s{t5}, 1
        s_cbranch_scc1 {ok}
        """)
        poll_issue()
        a(f"s_waitcnt vmcnt(0)\ns_branch {lp}")
        a.label(ok)
    def read_nonce():
        a(f"""
        v_mov_b32 v{PL}, {L_NONCE}
        ds_read_b32 v{PL+1}, v{PL}
        s_waitcnt lgkmcnt(0)
        v_readfirstlane_b32 s{NON}, v{PL+1}
        s_xor_b32 s{NON2}, s{NON}, 0x5bd1e995
        """)
    def q_scalars(qt, qro):
        a(f"""
        s_lshl_b32 s{t0}, s{QB}, 3
        s_and_b32 s{t1}, s{W}, 3
        s_lshl_b32 s{t1}, s{t1}, 1
        s_add_u32 s{qt}, s{t0}, s{t1}
        s_lshl_b32 s{t0}, s{H}, 6
        s_add_u32 s{t0}, s{t0}, s{qt}
        s_lshl_b32 s{qro}, s{t0}, 7
        s_add_u32 s{qro}, s{qro}, {WS_BR + WS_REM}
        """)
    def q_loads():
        q_scalars(t2, t3)
        a(f"""
        s_lshl_b32 s{t1}, s{t0}, 10
        s_add_u32 s{t1}, s{t1}, {WS_BR}
        v_lshlrev_b32 v{PL}, 2, v0
        buffer_load_dwordx4 {vr(QM0,4)}, v{L16}, {WS}, s{t1} offen sc1
        buffer_load_dwordx4 {vr(QM1,4)}, v{L16}, {WS}, s{t1} offen offset:1024 sc1
        buffer_load_dword v{QR}, v{PL}, {WS}, s{t3} offen sc1
        """)
    def dma_quarter(q, nw, widx):
        n = -(-34 // nw)
        for m in range(n):
            a(f"s_add_u32 s{t0}, s{widx}, {nw*m}")
            if nw * m + nw > 34: a(f"s_min_u32 s{t0}, s{t0}, 33")
            a(f"""
            s_lshl_b32 s{t1}, s{t0}, 10
            s_add_u32 m0, s{t1}, {L_SLOT + (q & 1) * SLOT}
            s_cmp_ge_u32 s{t0}, 17
            s_cselect_b32 s{t2}, 17, 0
            s_cselect_b32 s{t3}, 32, 0
            s_sub_u32 s{t0}, s{t0}, s{t2}
            s_cmp_ge_u32 s{t0}, 8
            s_cselect_b32 s{t2}, s{S_V}, s{S_KM}
            s_cselect_b32 s{t4}, s27, s35
            s_add_u32 s{t3}, s{t3}, {8*q}
            s_mul_i32 s{t3}, s{t3}, s{t4}
            s_lshl_b32 s{t0}, s{t0}, 10
            s_add_u32 s{t2}, s{t2}, s{t3}
            s_add_u32 s{t2}, s{t2}, s{t0}
            buffer_load_dwordx4 v{L16}, {WS}, s{t2} offen sc1 lds
            """)
        return n

    a(f"s_cmp_ge_u32 s2, 256\ns_cbranch_scc1 {N}_end")
    a.stamp(0)
    a(f"""
    s_load_dwordx16 s[36:51], s[0:1], 0
    s_load_dwordx4 s[52:55], s[0:1], 64
    v_lshrrev_b32 v1, 6, v0
    v_and_b32 v0, 63, v0
    s_lshr_b32 s3, s2, 3
    v_readfirstlane_b32 s{W}, v1
    s_and_b32 s{t0}, s3, 3
    s_and_b32 s{RB}, s2, 3
    s_lshl_b32 s{RB}, s{RB}, 2
    s_or_b32 s{RB}, s{RB}, s{t0}
    s_lshr_b32 s{QB}, s3, 2
    s_lshl_b32 s{CG}, s2, 1
    s_and_b32 s{CG}, s{CG}, 8
    s_or_b32 s{CG}, s{CG}, s{QB}
    s_and_b32 s{H}, s2, 7
    s_lshl_b32 s{H}, s{H}, 2
    s_or_b32 s{H}, s{H}, s{t0}
    v_lshlrev_b32 v{L16}, 4, v0
    v_lshrrev_b32 v{HF}, 5, v0
    v_and_b32 v{L32}, 31, v0
    s_cmp_ge_u32 s{W}, 4
    s_cbranch_scc0 {N}_gc
    """)
    LW, XO, WO, XL, WL, ST, CNT, PADS = 68, 69, 3, 27, 35, 34, 62, 63
    a(f"""
    s_sub_u32 s{LW}, s{W}, 4
    v_lshrrev_b32 v2, 3, v0
    v_mul_u32_u24 v2, 1152, v2
    v_lshrrev_b32 v3, 4, v0
    v_and_b32 v4, 7, v0
    v_xor_b32 v4, v4, v3
    v_lshl_add_u32 v10, v4, 4, v2
    v_xor_b32 v4, 4, v4
    v_lshl_add_u32 v11, v4, 4, v2
    v_add_u32 v11, {8*1152}, v11
    s_mul_i32 s{t0}, s{RB}, {128*1152}
    s_mul_i32 s{t1}, s{LW}, {32*1152}
    s_add_u32 s64, s{t0}, s{t1}
    s_mov_b32 s{XO}, s64
    s_lshl_b32 s{XL}, s{LW}, 12
    s_mov_b32 s{ST}, {L_G}
    s_waitcnt lgkmcnt(0)
    """)
    srd(SX, P_BX, 2048*1152); srd(SW_, P_BW, 576*3456)
    def issue_x():
        a(f"""
        s_add_u32 s{t0}, s{ST}, s{XL}
        s_mov_b32 m0, s{t0}
        s_add_u32 s{t1}, s{XO}, {16*1152}
        buffer_load_dwordx4 v10, {SX}, s{XO} offen lds
        s_add_u32 m0, s{t0}, 1024
        s_add_u32 s{t2}, s{ST}, s{WL}
        buffer_load_dwordx4 v11, {SX}, s{XO} offen lds
        s_add_u32 m0, s{t0}, 2048
        s_add_u32 s{XO}, s{XO}, 128
        buffer_load_dwordx4 v10, {SX}, s{t1} offen lds
        s_add_u32 m0, s{t0}, 3072
        s_add_u32 s{ST}, s{ST}, {G_STAGE}
        buffer_load_dwordx4 v11, {SX}, s{t1} offen lds
        """)
    def issue_w():
        a(f"""
        s_mov_b32 m0, s{t2}
        s_cmp_eq_u32 s{ST}, {LDS}
        s_cselect_b32 s{ST}, {L_G}, s{ST}
        buffer_load_dwordx4 v12, {SW_}, s{WO} offen lds
        s_add_u32 m0, s{t2}, 4096
        s_add_u32 s{t3}, s{t2}, 12288
        buffer_load_dwordx4 v13, {SW_}, s{WO} offen lds
        s_add_u32 m0, s{t2}, 8192
        s_cmp_lt_u32 s{LW}, 2
        buffer_load_dwordx4 v14, {SW_}, s{WO} offen lds
        s_cselect_b32 m0, s{t3}, {L_PAD}
        s_nop 0
        buffer_load_dwordx4 v15, {SW_}, s{WO} offen lds
        s_add_u32 s{WO}, s{WO}, {64*3456}
        """)
    def issue(): issue_x(); issue_w()
    a(f"s_lshl_b32 s{WL}, s{LW}, 10\ns_add_u32 s{WL}, s{WL}, 16384")
    a.stamp(1)
    issue_x()
    for q in range(1024): assert (q * 4682) >> 16 == q // 14
    a(f"s_lshl_b32 s{t3}, s{LW}, 6\nv_add_u32 v2, s{t3}, v0")
    for m in range(4):
        a(f"""
        v_add_u32 v3, {256*m}, v2
        v_mul_u32_u24 v4, 4682, v3
        v_lshrrev_b32 v4, 16, v4
        v_mul_u32_u24 v5, 14, v4
        v_sub_u32 v5, v3, v5
        v_and_b32 v6, 0x38, v4
        v_and_b32 v7, 1, v4
        v_lshl_add_u32 v6, v7, 2, v6
        v_bfe_u32 v7, v4, 1, 2
        v_add_u32 v6, v6, v7
        v_mul_u32_u24 v6, 3456, v6
        v_lshl_add_u32 v{12+m}, v5, 4, v6
        """)
    a(f"""
    v_cmp_gt_u32 vcc, 896, v3
    v_mov_b32 v4, 0x7fff0000
    s_mul_i32 s65, s{CG}, 216
    s_and_b32 s65, s65, 0xfffffff0
    v_cndmask_b32 v15, v4, v15, vcc
    s_mov_b32 s{WO}, s65
    """)
    issue_w()
    issue()
    a("s_waitcnt vmcnt(8)")
    a.stamp(2)
    a("s_barrier")
    issue()
    for q in range(576): assert (q * 7282) >> 16 == q // 9
    for i in range(3):
        a(f"s_lshl_b32 s{t3}, s{LW}, 6\ns_add_u32 s{t3}, s{t3}, 256" if i == 1 else (f"s_lshl_b32 s{t3}, s{LW}, 6" if i == 0 else f"s_mov_b32 s{t3}, 512"))
        a(f"""
        v_add_u32 v2, s{t3}, v0
        v_mul_u32_u24 v3, 7282, v2
        v_lshrrev_b32 v3, 16, v3            ; P64
        v_mul_u32_u24 v4, 9, v3
        v_sub_u32 v4, v2, v4
        v_lshlrev_b32 v4, 4, v4             ; piece*16
        v_lshrrev_b32 v5, 4, v3
        v_bfe_u32 v6, v3, 2, 2              ; r
        v_bfe_u32 v7, v3, 1, 1              ; hf
        v_and_b32 v3, 1, v3                 ; t
        v_and_b32 v2, 1, v5
        v_mad_u32_u24 v2, v5, 9, v2
        v_lshl_add_u32 v2, v2, 1, v6
        v_lshl_add_u32 v2, v3, 3, v2
        v_lshl_add_u32 v2, v7, 2, v2
        v_mul_u32_u24 v2, 1152, v2
        v_add_u32 v{WOP+i}, v2, v4
        v_lshlrev_b32 v2, 3, v5
        v_lshl_add_u32 v2, v7, 2, v2
        v_lshl_add_u32 v2, v3, 1, v2
        v_lshrrev_b32 v3, 1, v6
        v_add_u32 v2, v2, v3                ; head
        v_mul_u32_u24 v2, 18, v2
        v_xor_b32 v3, 1, v3
        v_lshl_add_u32 v2, v3, 4, v2
        v_and_b32 v6, 1, v6
        v_add_u32 v2, v2, v6
        v_mul_u32_u24 v2, 1152, v2
        v_add_u32 v{WOP+3+i}, v2, v4
        """)
    a(f"s_mov_b32 s{CNT}, 6")
    a.label(f"{N}_ll1")
    a("s_waitcnt vmcnt(8)\ns_barrier")
    issue()
    a(f"s_sub_u32 s{CNT}, s{CNT}, 1\ns_cmp_lg_u32 s{CNT}, 0\ns_cbranch_scc1 {N}_ll1")
    srd(SX, P_AX, 2048*1152); srd(SW_, P_AW, 576*3456)
    a(f"s_mov_b32 s{XO}, s64\ns_mov_b32 s{WO}, s65\ns_mov_b32 s{CNT}, 8")
    a.label(f"{N}_ll2")
    a("s_waitcnt vmcnt(8)\ns_barrier")
    issue()
    a(f"s_sub_u32 s{CNT}, s{CNT}, 1\ns_cmp_lg_u32 s{CNT}, 0\ns_cbranch_scc1 {N}_ll2")
    srd(WS, P_WS, WS_SIZE)
    read_nonce()
    div6(t0, H, 32); div6(t1, H, 64); div6(t2, H, 0)
    a(f"""
    v_and_b32 v2, 15, v0
    v_mov_b32 v3, s{t0}
    v_mov_b32 v4, s{t1}
    v_cmp_gt_u32 vcc, 16, v0
    s_lshl_b32 s{t3}, s{QB}, 1
    v_and_or_b32 v5, v0, 1, s{t3}
    v_cndmask_b32 v3, v4, v3, vcc
    v_lshl_add_u32 v3, v2, 4, v3
    v_lshl_add_u32 v5, v5, 4, s{t2}
    v_cmp_gt_u32 vcc, 32, v0
    s_lshl_b32 s{S_KM}, s{H}, 16
    s_add_u32 s{S_KM}, s{S_KM}, {WS_BR + 2*MB}
    v_cndmask_b32 v3, v5, v3, vcc
    v_lshlrev_b32 v3, 7, v3
    v_add_u32 v{PL+4}, {FGB}, v3
    s_waitcnt vmcnt(8)
    s_barrier
    """)
    poll_issue()
    issue()
    poll_check(8)
    a.stamp(3)
    a("s_barrier")
    a(f"""
    s_mul_i32 s{S_V}, s{H}, 73728
    s_add_u32 s{S_V}, s{S_V}, {WS_BR + WS_V - 8192}
    s_lshl_b32 s{S_KR}, s{H}, 13
    s_add_u32 s{S_KR}, s{S_KR}, {WS_BR + WS_REM + 256*1024}
    s_mov_b32 s27, 1152
    s_mov_b32 s35, 1024
    """)
    q_loads()
    n0 = dma_quarter(0, 4, LW)
    for m in range(2):
        a(f"""
        s_lshl_b32 s{t0}, s{LW}, 10
        s_add_u32 m0, s{t0}, {L_KR + 4096*m}
        s_add_u32 s{t0}, s{t0}, s{S_KR}
        s_add_u32 s{t0}, s{t0}, {4096*m}
        buffer_load_dwordx4 v{L16}, {WS}, s{t0} offen sc1 lds
        """)
    a(f"s_waitcnt vmcnt({3 + n0 + 2})\ns_barrier\ns_barrier")
    n1 = dma_quarter(1, 4, LW)
    a(f"s_waitcnt vmcnt({n1})\ns_branch {N}_att")

    a.label(f"{N}_gc")
    ACC, XF, WF, T = 16, 80, 96, 112
    XA, WA, RM = 2, 6, 10
    RP, CW, JA, JB, CH, STG, DL, DN, DP, ROWT, JBASE, QS = 68, 69, 62, 64, 66, 67, 3, 27, 35, 98, 99, 100
    a(f"""
    s_lshr_b32 s{RP}, s{W}, 1
    s_and_b32 s{CW}, s{W}, 1
    s_waitcnt lgkmcnt(0)
    """)
    srd(WS, P_WS, WS_SIZE); srd(SD, P_DBG, 256)
    for i in range(6): a(f"v_mov_b32 v{WOP+i}, 0")
    a(f"""
    s_lshl_b32 s{t0}, s2, 3
    s_add_u32 s{t0}, s{t0}, s{W}
    s_cmp_eq_u32 s{t0}, 1
    s_cbranch_scc0 {N}_notag
    s_mov_b32 s{t1}, {EPOCH}
    v_mov_b32 v3, 0
    buffer_load_dword v2, v3, {WS}, s{t1} offen sc1
    s_waitcnt vmcnt(0)
    v_add_u32 v2, 1, v2
    v_or_b32 v2, 0x80000000, v2
    s_mov_b64 exec, 1
    buffer_store_dword v2, v3, {SD}, 0 offen sc1
    buffer_store_dword v2, v3, {WS}, s{t1} offen sc1
    s_mov_b64 exec, -1
    """)
    a.label(f"{N}_notag")
    if OPT["prefetch"]:
        a(f"""
        s_cmp_eq_u32 s{W}, 2
        s_cbranch_scc0 {N}_nopf
        s_getpc_b64 s[{t2}:{t3}]
        s_bfe_u32 s{t0}, s2, {(3<<16)|3}
        s_lshl_b32 s{t0}, s{t0}, 13
        v_lshl_add_u32 v2, v0, 7, s{t0}
        v_min_u32 v2, {N}_end - {N}_nopf, v2
        global_load_dword v255, v2, s[{t2}:{t3}]
        """)
        a.label(f"{N}_nopf")
    dflt = [(1,2),(3,4),(0,5)]; mix = [(1,2),(0,3),(4,5)]
    pk = lambda t: sum((x << (8*i)) | (y << (8*i+4)) for i, (x, y) in enumerate(t))
    a(f"""
    s_mov_b32 s{t0}, {pk(mix)}
    s_cmp_eq_u32 s{CG}, 10
    s_cselect_b32 s{t0}, s{t0}, {pk(dflt)}
    s_lshl_b32 s{t1}, s{CW}, 4
    s_lshr_b32 s{t0}, s{t0}, s{t1}
    s_bfe_u32 s{JA}, s{t0}, {(4<<16)|0}
    s_bfe_u32 s{JB}, s{t0}, {(4<<16)|4}
    s_bfe_u32 s{JA+1}, s{t0}, {(4<<16)|8}
    s_bfe_u32 s{JB+1}, s{t0}, {(4<<16)|12}
    v_bfe_u32 v12, v0, 1, 3
    s_lshl_b32 s{t0}, s{RP}, 13
    s_add_u32 s{t0}, s{t0}, {L_G}
    v_lshl_add_u32 v13, v{L32}, 7, s{t0}
    """)
    for ks in range(4):
        a(f"v_or_b32 v14, {2*ks}, v{HF}\nv_xor_b32 v14, v14, v12\nv_lshl_add_u32 v{XA+ks}, v14, 4, v13")
    a(f"""
    v_bfe_u32 v12, v0, 2, 2
    v_lshl_add_u32 v12, v{HF}, 2, v12
    v_mul_u32_u24 v12, 448, v12
    s_and_b32 s{t4}, s{CG}, 1
    s_lshl_b32 s{t0}, s{t4}, 3
    s_add_u32 s{t0}, s{t0}, {L_G + 16384}
    v_add_u32 v12, s{t0}, v12
    v_and_b32 v13, 3, v0
    v_bfe_u32 v14, v0, 4, 1
    v_cmp_eq_u32 vcc, 0, v14
    """)
    for t in range(2):
        for (s, d) in ((JA+t, t2), (JB+t, t3)):
            a(f"s_lshr_b32 s{t0}, s{s}, 1\ns_mul_i32 s{t0}, s{t0}, 9\ns_and_b32 s{t1}, s{s}, 1\ns_mul_i32 s{t1}, s{t1}, 5\ns_add_u32 s{d}, s{t0}, s{t1}")
        a(f"v_mov_b32 v15, s{t3}\nv_mov_b32 v11, s{t2}\nv_cndmask_b32 v15, v15, v11, vcc\nv_add_u32 v15, v15, v13\nv_lshl_add_u32 v{WA+t}, v15, 3, v12")
    a(f"""
    s_cmp_eq_u32 s{CW}, 0
    s_cbranch_scc1 {N}_nor
    v_lshl_add_u32 v15, v14, 2, v13
    v_min_u32 v15, 2, v15
    v_mad_u32_u24 v15, v15, 9, 4
    v_lshl_add_u32 v{WA+1}, v15, 3, v12
    """)
    a.label(f"{N}_nor")
    a(f"""
    v_cmp_gt_u32 vcc, 12, v{L32}
    s_mov_b32 s{DN}, {(-2*G_STAGE) & 0xffffffff}
    s_mov_b32 s{DP}, {G_STAGE}
    v_cndmask_b32 v{RM}, 0, -1, vcc
    s_mov_b32 s{STG}, 0
    s_mov_b32 s{CH}, 0
    s_mov_b32 s{BR}, 1
    s_lshl_b32 s{ROWT}, s{RB}, 2
    s_lshl_b32 s{t0}, s{RP}, 1
    s_add_u32 s{ROWT}, s{ROWT}, s{t0}
    s_mul_i32 s{JBASE}, s{CG}, 6
    s_mov_b32 s{QS}, {f32bits(QSCALE)}
    """)
    rho_v(a, "v11", f"v{L32}", "v12")
    a(f"""
    v_lshl_add_u32 v11, v{HF}, 5, v11
    v_lshlrev_b32 v11, 4, v11
    v_and_b32 v12, 15, v0
    v_lshlrev_b32 v12, 4, v12
    v_mul_u32_u24 v15, 288, v{HF}
    v_add_u32 v12, v12, v15
    v_cmp_eq_u32 {VM}, 0, v14
    """)
    def reads(ks, buf):
        x = XF + 8*buf; w = WF + 8*buf
        return [f"ds_read_b128 {vr(x,4)}, v{XA+ks}",
                f"ds_read_b64_tr_b16 {vr(w,2)}, v{WA} offset:{ks*3584}", f"ds_read_b64_tr_b16 {vr(w+2,2)}, v{WA} offset:{ks*3584+224}",
                f"ds_read_b128 {vr(x+4,4)}, v{XA+ks} offset:4096",
                f"ds_read_b64_tr_b16 {vr(w+4,2)}, v{WA+1} offset:{ks*3584}", f"ds_read_b64_tr_b16 {vr(w+6,2)}, v{WA+1} offset:{ks*3584+224}"]
    def mfmas(buf, ori):
        x = XF + 8*buf; w = WF + 8*buf
        L = []
        for t in range(2):
            for rt in range(2):
                d = vr(ACC + 16*(2*t+rt), 16)
                A, B = (vr(w+4*t,4), vr(x+4*rt,4)) if ori[t] == "1" else (vr(x+4*rt,4), vr(w+4*t,4))
                L.append(f"v_mfma_f32_32x32x16_bf16 {d}, {A}, {B}, {d}")
        return L
    a.stamp(1)
    a("s_barrier")
    a.stamp(2)
    for l in reads(0, 0): a(l)
    a.label(f"{N}_gbr")
    for r in range(64): a(f"v_mov_b32 v{ACC+r}, 0")
    a(f"""
    s_cmp_eq_u32 s{CW}, 0
    s_cbranch_scc0 {N}_selr
    s_cmp_le_u32 s{CG}, 10
    s_cbranch_scc1 {N}_v11
    s_branch {N}_v22
    """)
    a.label(f"{N}_selr")
    a(f"s_cmp_le_u32 s{CG}, 9\ns_cbranch_scc1 {N}_v1R\ns_branch {N}_v2R")
    def mainloop(ori):
        a.label(f"{N}_v{ori}")
        for ks in range(4):
            M = mfmas(ks & 1, ori); R = reads((ks+1) & 3, (ks+1) & 1)
            w = WF + 8*(ks & 1)
            a("s_waitcnt lgkmcnt(0)")
            a(M[0])
            if ks == 3:
                a(f"s_bitcmp1_b32 {(1<<11)|(1<<13)|(1<<16)}, s{CH}\ns_cbranch_scc1 {N}_hk{ori}\ns_barrier")
                a.label(f"{N}_hr{ori}")
            for l in R[:3]: a(l)
            if ori[1] == "R" and OPT["remmask"]:
                for r in range(2): a(f"v_and_b32 v{w+4+r}, v{RM}, v{w+4+r}")
            a(M[1])
            if ori[1] == "R" and OPT["remmask"]:
                for r in range(2, 4): a(f"v_and_b32 v{w+4+r}, v{RM}, v{w+4+r}")
            for l in R[3:]: a(l)
            a(M[2])
            if ks == 1:
                a(f"s_add_u32 s{STG}, s{STG}, 1\ns_cmp_eq_u32 s{STG}, 3\ns_cselect_b32 s{DL}, s{DN}, s{DP}\ns_cselect_b32 s{STG}, 0, s{STG}")
            if ks == 2:
                for r in range(6): a(f"v_add_u32 v{XA+r}, s{DL}, v{XA+r}")
            if ks == 3: a(f"s_add_u32 s{CH}, s{CH}, 1\ns_bitcmp1_b32 {(1<<9)|(1<<18)}, s{CH}")
            a(M[3])
        a(f"s_cbranch_scc0 {N}_v{ori}")
        a(f"""
        v_mov_b32 v13, 0
        s_mul_i32 s{t5}, s{BR}, {WS_BR}
        s_waitcnt vmcnt(0)
        s_cmp_eq_u32 s{BR}, 0
        s_cbranch_scc1 {N}_nq{ori}
        buffer_load_dword v{PL+5}, v13, {SD}, 0 offen sc1
        """)
        a.label(f"{N}_nq{ori}")
        if STAMPS:
            lab = a.newlabel(N + "_st")
            a(f"s_cbranch_scc0 {lab}"); a.stamp(5); a(f"s_branch {lab}x"); a.label(lab); a.stamp(3); a.label(lab + "x")
        a.nop(6)
    def ep_o1(t):
        for half, J in ((0, JA+t), (1, JB+t)):
            lab = a.newlabel(N + "_ns")
            a(f"""
            s_add_u32 s{t2}, s{JBASE}, s{J}
            s_cmp_lt_u32 s{t2}, 32
            s_cselect_b32 s{t0}, s{BR}, 0
            s_lshl_b32 s{t2}, s{t2}, 6
            s_add_u32 s{t2}, s{t2}, s{ROWT}
            s_lshl_b32 s{t2}, s{t2}, 10
            s_add_u32 s{t2}, s{t2}, s{t5}
            s_cmp_eq_u32 s{t0}, 0
            s_cbranch_scc1 {lab}
            """)
            for rt in range(2):
                d = ACC + 16*(2*t+rt) + 8*half
                for r in range(8): a(f"v_mul_f32 v{d+r}, s{QS}, v{d+r}")
            a.label(lab)
            for rt in range(2):
                d = ACC + 16*(2*t+rt) + 8*half
                o = T + 4*(2*half+rt)
                for r in range(4): a(f"v_cvt_pk_bf16_f32 v{o+r}, v{d+2*r}, v{d+2*r+1}")
                a(f"buffer_store_dwordx4 {vr(o,4)}, v11, {WS}, s{t2} offen offset:{1024*rt} sc1")
    def ep_o2(t):
        a(f"""
        s_add_u32 s{t0}, s{JBASE}, s{JA+t}
        s_mul_i32 s{t0}, s{t0}, 73728
        s_add_u32 s{t1}, s{JBASE}, s{JB+t}
        s_mul_i32 s{t1}, s{t1}, 73728
        v_mov_b32 v13, s{t0}
        v_mov_b32 v15, s{t1}
        v_cndmask_b32 v13, v15, v13, {VM}
        v_add_u32 v13, v13, v12
        s_mul_i32 s{t2}, s{ROWT}, 1152
        s_add_u32 s{t2}, s{t2}, s{t5}
        v_add_u32 v13, {(WS_V - 64*73728) & 0xffffffff}, v13
        """)
        for rt in range(2):
            for sub in range(2):
                d = ACC + 16*(2*t+rt) + 8*sub
                o = T + 4*(2*rt+sub)
                for r in range(4): a(f"v_cvt_pk_bf16_f32 v{o+r}, v{d+2*r}, v{d+2*r+1}")
                a(f"buffer_store_dwordx4 {vr(o,4)}, v13, {WS}, s{t2} offen offset:{1152*rt+576*sub} sc1")
    def ep_rem():
        lv = a.newlabel(N + "_nov"); lq = a.newlabel(N + "_noq")
        MQ, MV = "s[96:97]", "s[94:95]"
        a(f"""
        v_lshrrev_b32 v13, 1, v{L32}
        v_add_u32 v13, s{JBASE}, v13
        v_and_b32 v14, 1, v{L32}
        v_cmp_gt_u32 {MQ}, 12, v{L32}
        v_cmp_le_u32 vcc, 64, v13
        s_and_b64 {MV}, {MQ}, vcc
        s_andn2_b64 {MQ}, {MQ}, vcc
        v_cmp_eq_u32 vcc, 0, v14
        s_and_b64 {MQ}, {MQ}, vcc
        s_cmp_eq_u64 {MV}, 0
        s_cbranch_scc1 {lv}
        v_add_u32 v15, -64, v13
        v_mul_u32_u24 v15, 73728, v15
        v_mul_u32_u24 v{T}, 288, v{HF}
        v_add_u32 v15, v15, v{T}
        v_lshl_add_u32 v15, v14, 4, v15
        s_mul_i32 s{t2}, s{ROWT}, 1152
        s_add_u32 s{t2}, s{t2}, s{t5}
        s_add_u32 s{t2}, s{t2}, {WS_V + 256}
        """)
        for rt in range(2):
            d = ACC + 32 + 16*rt
            for sub in range(2):
                for r in range(4): a(f"v_cvt_pk_bf16_f32 v{T+8*rt+4*sub+r}, v{d+8*sub+2*r}, v{d+8*sub+2*r+1}")
        a(f"s_mov_b64 exec, {MV}")
        for rt in range(2):
            for sub in range(2): a(f"buffer_store_dwordx4 {vr(T+8*rt+4*sub,4)}, v15, {WS}, s{t2} offen offset:{1152*rt+576*sub} sc1")
        a("s_mov_b64 exec, -1")
        a.label(lv)
        a(f"""
        s_cmp_eq_u64 {MQ}, 0
        s_cbranch_scc1 {lq}
        s_cmp_eq_u32 s{BR}, 0
        s_cselect_b32 s{t0}, 1.0, s{QS}
        v_mov_b32 v14, s{t0}
        v_cmp_gt_u32 vcc, 32, v13
        v_lshlrev_b32 v15, 13, v13
        v_lshl_add_u32 v15, v{HF}, 5, v15
        v_cndmask_b32 v14, 1.0, v14, vcc
        s_lshl_b32 s{t2}, s{ROWT}, 7
        s_add_u32 s{t2}, s{t2}, s{t5}
        s_add_u32 s{t2}, s{t2}, {WS_REM}
        """)
        for rt in range(2):
            d = ACC + 32 + 16*rt
            for r in range(16): a(f"v_mul_f32 v{d+r}, v14, v{d+r}")
            for r in range(16): a(f"v_mov_b32_dpp v{T+r}, v{d+r} quad_perm:[1,1,3,3] row_mask:0xf bank_mask:0xf")
            for r in range(16): a(f"v_cvt_pk_bf16_f32 v{d+r}, v{d+r}, v{T+r}")
        a(f"s_mov_b64 exec, {MQ}")
        for rt in range(2):
            d = ACC + 32 + 16*rt
            for jq in range(4): a(f"buffer_store_dwordx4 {vr(d+4*jq,4)}, v15, {WS}, s{t2} offen offset:{128*rt+64*(jq>>1)+16*(jq&1)} sc1")
        a("s_mov_b64 exec, -1\ns_nop 0")
        a.label(lq)
    for ori in ("11", "22", "1R", "2R"):
        mainloop(ori)
        (ep_o1 if ori[0] == "1" else ep_o2)(0)
        if ori[1] == "R": a(f"s_branch {N}_erem")
        else:
            (ep_o1 if ori[1] == "1" else ep_o2)(1)
            a(f"s_branch {N}_edone")
        a.label(f"{N}_hk{ori}")
        a(f"s_mov_b32 s{t4}, {['11','22','1R','2R'].index(ori)}\ns_branch {N}_hook")
    a.label(f"{N}_hook")
    a(f"""
    s_cmp_eq_u32 s{CH}, 13
    s_cbranch_scc1 {N}_hook13
    s_cmp_eq_u32 s{CH}, 16
    s_cbranch_scc1 {N}_hook16
    s_waitcnt vmcnt(0)
    s_cmp_eq_u32 s{W}, 0
    s_cbranch_scc1 {N}_hook11w0
    s_barrier
    s_branch {N}_hret
    """)
    a.label(f"{N}_hook11w0")
    a(f"s_mov_b32 s{t5}, {SPIN}")
    a.label(f"{N}_tagl")
    a(f"""
    v_readfirstlane_b32 s{NON}, v{PL+5}
    s_cmp_lg_u32 s{NON}, 0
    s_cbranch_scc1 {N}_tagok
    s_sub_u32 s{t5}, s{t5}, 1
    s_cbranch_scc1 {N}_tagok
    v_mov_b32 v13, 0
    buffer_load_dword v{PL+5}, v13, {SD}, 0 offen sc1
    s_waitcnt vmcnt(0)
    s_branch {N}_tagl
    """)
    a.label(f"{N}_tagok")
    a(f"""
    s_xor_b32 s{NON2}, s{NON}, 0x5bd1e995
    v_mov_b32 v13, {L_NONCE}
    ds_write_b32 v13, v{PL+5}
    s_lshl_b32 s{t0}, s{RB}, 4
    s_add_u32 s{t0}, s{t0}, s{CG}
    s_lshl_b32 s{t0}, s{t0}, 7
    s_add_u32 s{t0}, s{t0}, {FGB}
    s_waitcnt lgkmcnt(0)
    s_barrier
    """)
    flag_store(t0)
    a(f"s_branch {N}_hret")
    a.label(f"{N}_hook13")
    a("s_barrier")
    read_nonce()
    a(f"s_branch {N}_hret")
    a.label(f"{N}_hook16")
    a("s_barrier")
    q_loads()
    a.label(f"{N}_hret")
    for i, ori in enumerate(("11", "22", "1R")):
        a(f"s_cmp_eq_u32 s{t4}, {i}\ns_cbranch_scc1 {N}_hr{ori}")
    a(f"s_branch {N}_hr2R")
    a.label(f"{N}_erem")
    ep_rem()
    a.label(f"{N}_edone")
    a(f"s_sub_u32 s{BR}, s{BR}, 1\ns_cbranch_scc0 {N}_gbr")
    a.stamp(6)
    a(f"""
    s_lshl_b32 s{S_KM}, s{H}, 16
    s_add_u32 s{S_KM}, s{S_KM}, {WS_BR + 2*MB}
    s_mul_i32 s{S_V}, s{H}, 73728
    s_add_u32 s{S_V}, s{S_V}, {WS_BR + WS_V - 8192}
    s_lshl_b32 s{S_KR}, s{H}, 13
    s_add_u32 s{S_KR}, s{S_KR}, {WS_BR + WS_REM + 256*1024}
    s_mov_b32 s27, 1152
    s_mov_b32 s35, 1024
    s_waitcnt lgkmcnt(0)
    """)

    a.label(f"{N}_att")
    KM, KR, VA, VB, O0, O1, SA, SB = 16, 20, 24, 32, 40, 56, 72, 104
    KH = 34
    a(f"""
    s_lshr_b32 s{KH}, s{W}, 2
    s_mov_b32 s28, 0x3ffff
    s_mov_b32 s29, 0x3ffff
    v_mul_u32_u24 v{VOFF}, 288, v{HF}
    v_lshl_add_u32 v{VOFF}, v{L32}, 4, v{VOFF}
    v_cmp_eq_u32 vcc, 18, v{L32}
    v_mov_b32 v10, 0x3f803f80
    s_mul_i32 s{t0}, s{KH}, {KHB}
    s_add_u32 s{t0}, s{t0}, {L_SLOT}
    v_cndmask_b32 v10, 0, v10, vcc
    v_add_u32 v{AK}, s{t0}, v{L16}
    s_add_u32 s{t0}, s{t0}, 8192
    v_add_u32 v{AV}, s{t0}, v{VOFF}
    s_lshl_b32 s{t0}, s{KH}, 12
    v_lshl_add_u32 v{AR}, v{L32}, 2, s{t0}
    v_mov_b32 v{IDX}, 0xdddd
    v_mov_b32 v{QR+1}, 0
    v_mov_b32 v{KR+1}, 0
    s_lshl_b32 s{S_AT}, s{QB}, 3
    s_add_u32 s{S_AT}, s{S_AT}, s{W}
    """)
    q_scalars(S_QT, S_QRO)
    for r in range(16): a(f"v_mov_b32 v{VA+r}, v10")
    for r in range(32): a(f"v_mov_b32 v{O0+r}, 0")
    srd(SP, P_PHI, 32*648)
    a.stamp(7)
    a("s_barrier")
    def koff(j): return ((j >> 3) & 1) * SLOT + (j & 7) * 1024
    def voff(j): return ((j >> 3) & 1) * SLOT + (j & 7) * 1152
    def rdKm(j): a(f"ds_read_b128 {vr(KM,4)}, v{AK} offset:{koff(j)}")
    def rdKr(j): a(f"ds_read_b32 v{KR}, v{AR} offset:{128*j}")
    def rdV(j):
        b = VA if j % 2 == 0 else VB
        a(f"s_mov_b64 exec, {VM}\nds_read_b128 {vr(b,4)}, v{AV} offset:{voff(j)}\nds_read_b128 {vr(b+4,4)}, v{AV} offset:{voff(j)+576}\ns_mov_b64 exec, -1")
    def smf(o, v, s): a(f"v_smfmac_f32_32x32x32_bf16 {vr(o,16)}, {vr(v,4)}, {vr(s,8)}, v{IDX}")
    rdKm(0); rdKr(0); rdV(0)
    a(f"""
    s_waitcnt lgkmcnt(0)
    v_mfma_f32_32x32x16_bf16 {vr(SA,16)}, {vr(KM,4)}, {vr(QM0,4)}, 0
    v_mfma_f32_32x32x16_bf16 {vr(SA+16,16)}, {vr(KM,4)}, {vr(QM1,4)}, 0
    """)
    rdKm(1)
    a(f"s_nop 8\nv_mfma_f32_32x32x4_2b_bf16 {vr(SA,32)}, {vr(KR,2)}, {vr(QR,2)}, {vr(SA,32)}")
    rdKr(1)
    a.nop(16)

    XK, XKR, XQ, XQR, AVF, WM, WR, WT = 176, 180, 182, 186, 188, 196, 200, 202
    P, E1, TT, PK, FA, KV0 = 202, 218, 140, 228, 238, 202
    KVL = 202
    def only(lo, hi, body):
        lab = a.newlabel(N + "_sk")
        if lo == 0: a(f"s_cmp_ge_u32 s{W}, {hi}\ns_cbranch_scc1 {lab}")
        else: a(f"s_cmp_lt_u32 s{W}, {lo}\ns_cbranch_scc1 {lab}")
        body()
        a.label(lab)
    def hq_line(base):
        a(f"s_lshl_b32 s{t0}, s{H}, 3\ns_add_u32 s{t0}, s{t0}, s{QB}\ns_lshl_b32 s{t0}, s{t0}, 7\ns_add_u32 s{t0}, s{t0}, {base}\ns_lshl_b32 s{t1}, s{W}, 3\ns_add_u32 s{t0}, s{t0}, s{t1}")
    def hook2():
        def b():
            a(f"s_lshl_b32 s{t0}, s{RB}, 4\ns_add_u32 s{t0}, s{t0}, s{CG}\ns_lshl_b32 s{t0}, s{t0}, 7\ns_add_u32 s{t0}, s{t0}, {FGA}\ns_lshl_b32 s{t1}, s{W}, 3\ns_add_u32 s{t0}, s{t0}, s{t1}\ns_waitcnt vmcnt(0)")
            flag_store(t0)
        only(0, 4, b)
    def hook4():
        div6(t0, H, 0); div6(t1, H, 32); div6(t2, H, 64)
        a(f"""
        v_mov_b32 v2, s{t0}
        v_mov_b32 v3, s{t1}
        v_cmp_gt_u32 vcc, 8, v0
        v_mov_b32 v4, s{t2}
        s_lshl_b32 s{t3}, s{QB}, 1
        v_cndmask_b32 v2, v3, v2, vcc
        v_cmp_gt_u32 vcc, 16, v0
        v_bfe_u32 v3, v0, 2, 1
        v_or_b32 v3, s{t3}, v3
        v_cndmask_b32 v2, v4, v2, vcc
        v_lshl_add_u32 v2, v3, 4, v2
        v_and_b32 v3, 3, v0
        v_lshlrev_b32 v3, 3, v3
        v_lshl_add_u32 v2, v2, 7, v3
        v_add_u32 v{PL+4}, {FGA}, v2
        """)
        poll_issue()
    def hook6():
        poll_check(0)
        a("s_waitcnt lgkmcnt(0)\ns_barrier")
        for r in range(8): a(f"v_mov_b32 v{AVF+r}, v10")
        a(f"""
        s_lshl_b32 s{t0}, s{H}, 6
        s_add_u32 s{t0}, s{t0}, s{S_AT}
        s_lshl_b32 s{t1}, s{t0}, 10
        s_add_u32 s{t2}, s{t1}, {2*MB}
        s_mul_i32 s{t3}, s{t0}, 1152
        s_add_u32 s{t3}, s{t3}, {WS_V}
        s_lshl_b32 s{t0}, s{t0}, 7
        s_add_u32 s{t0}, s{t0}, {WS_REM}
        s_add_u32 s{t4}, s{t0}, {256*1024}
        v_lshlrev_b32 v2, 2, v{L32}
        buffer_load_dwordx4 {vr(XK,4)}, v{L16}, {WS}, s{t2} offen sc1
        buffer_load_dword v{XKR}, v2, {WS}, s{t4} offen sc1
        s_mov_b64 exec, {VM}
        buffer_load_dwordx4 {vr(AVF,4)}, v{VOFF}, {WS}, s{t3} offen sc1
        buffer_load_dwordx4 {vr(AVF+4,4)}, v{VOFF}, {WS}, s{t3} offen offset:576 sc1
        s_mov_b64 exec, -1
        buffer_load_dwordx4 {vr(XQ,4)}, v{L16}, {WS}, s{t1} offen sc1
        buffer_load_dword v{XQR}, v2, {WS}, s{t0} offen sc1
        s_and_b32 s{t0}, s{H}, 1
        s_mul_i32 s{t1}, s{t0}, 72
        s_mul_i32 s{t2}, s{H}, 648
        s_add_u32 s{t1}, s{t1}, s{t2}
        s_cmp_eq_u32 s{t0}, 0
        s_cselect_b32 s{t0}, {16*36}, 0
        s_add_u32 s{t2}, s{t2}, s{t0}
        v_mov_b32 v2, 0x7fffff00
        v_cmp_eq_u32 vcc, 20, v{L32}
        v_lshlrev_b32 v3, 1, v{L32}
        v_mul_u32_u24 v4, 144, v{HF}
        v_cndmask_b32 v2, v2, 34, vcc
        v_cmp_ge_u32 vcc, 16, v{L32}
        v_mov_b32 v{XKR+1}, 0
        v_mov_b32 v{XQR+1}, 0
        v_cndmask_b32 v2, v2, v3, vcc
        v_add_u32 v3, v2, v4
        v_lshl_add_u32 v2, v{HF}, 30, v2
        """)
        for t in range(8): a(f"buffer_load_ushort v{WT+t}, v3, {SP}, s{t1} offen offset:{(8*(t//4)+t%4)*36}")
        for t in range(2): a(f"buffer_load_ushort v{WT+8+t}, v2, {SP}, s{t2} offen offset:{36*t}")
        return dma_quarter(2, 8, W)
    def features(xm, xr, dst):
        T_ = TT
        a(f"v_mfma_f32_32x32x16_bf16 {vr(P,16)}, {vr(WM,4)}, {vr(xm,4)}, 0")
        a(f"v_mfma_f32_32x32x8_bf16 {vr(P,16)}, {vr(WR,2)}, {vr(xr,2)}, {vr(P,16)}")
        a.nop(12)
        for op, t in (("max", T_), ("min", T_+2)):
            a(f"""
            v_{op}3_f32 v{t}, v{P}, v{P+1}, v{P+2}
            v_{op}3_f32 v{t}, v{t}, v{P+3}, v{P+4}
            v_{op}3_f32 v{t}, v{t}, v{P+5}, v{P+6}
            v_{op}3_f32 v{t}, v{t}, v{P+7}, v{P+8}
            v_mov_b32 v{t+1}, v{t}
            """)
        a(f"""
        s_nop 1
        v_permlane32_swap_b32 v{T_}, v{T_+1}
        v_permlane32_swap_b32 v{T_+2}, v{T_+3}
        v_max_f32 v{T_}, v{T_}, v{T_+1}
        v_min_f32 v{T_+2}, v{T_+2}, v{T_+3}
        v_mul_f32 v{T_}, s{t4}, v{T_}
        v_mul_f32 v{T_+2}, s{t4}, v{T_+2}
        """)
        for r in range(9): a(f"v_fma_f32 v{E1+r}, v{P+r}, s{t4}, -v{T_}")
        for r in range(9): a(f"v_fma_f32 v{P+r}, -v{P+r}, s{t4}, v{T_+2}")
        for r in range(9): a(f"v_exp_f32 v{E1+r}, v{E1+r}")
        for r in range(9): a(f"v_exp_f32 v{P+r}, v{P+r}")
        for e, t in ((E1, T_), (P, T_+2)):
            a(f"v_add_f32 v{t}, v{e}, v{e+1}")
            for r in range(2, 9): a(f"v_add_f32 v{t}, v{t}, v{e+r}")
            a(f"v_mov_b32 v{t+1}, v{t}")
        a(f"""
        s_nop 1
        v_permlane32_swap_b32 v{T_}, v{T_+1}
        v_permlane32_swap_b32 v{T_+2}, v{T_+3}
        v_add_f32 v{T_}, v{T_}, v{T_+1}
        v_add_f32 v{T_+2}, v{T_+2}, v{T_+3}
        v_rcp_f32 v{T_}, v{T_}
        v_rcp_f32 v{T_+2}, v{T_+2}
        s_nop 0
        """)
        for r in range(9): a(f"v_mul_f32 v{E1+r}, v{E1+r}, v{T_}")
        for r in range(9): a(f"v_mul_f32 v{P+r}, v{P+r}, v{T_+2}")
        for r in range(4): a(f"v_cvt_pk_bf16_f32 v{dst+r}, v{E1+2*r}, v{E1+2*r+1}")
        for r in range(4): a(f"v_cvt_pk_bf16_f32 v{dst+4+r}, v{P+2*r}, v{P+2*r+1}")
        a(f"v_cvt_pk_bf16_f32 v{dst+8}, v{E1+8}, v{P+8}\nv_mov_b32 v{dst+9}, 0")
    def sum8():
        for w in range(1, 8):
            for r in range(0, 4, 2): a(f"v_pk_add_f32 {vr(KVL+r,2)}, {vr(KVL+r,2)}, {vr(KVL+4*w+r,2)}")
    def hook8(nq):
        a(f"s_mov_b32 s{t4}, {f32bits(LOG2E)}\ns_waitcnt vmcnt({nq})")
        for r in range(4): a(f"v_lshl_or_b32 v{WM+r}, v{WT+2*r+1}, 16, v{WT+2*r}")
        a(f"v_lshl_or_b32 v{WR}, v{WT+9}, 16, v{WT+8}\nv_mov_b32 v{WR+1}, 0\ns_nop 1")
        features(XK, XKR, PK)
        a(f"""
        v_and_b32 v2, 16, v{L32}
        v_and_b32 v3, 3, v{L32}
        v_lshl_add_u32 v2, v3, 2, v2
        v_bfe_u32 v3, v{L32}, 2, 2
        v_add_u32 v2, v2, v3
        v_mul_u32_u24 v2, 80, v2
        v_lshl_add_u32 v2, v{HF}, 3, v2
        s_mul_i32 s{t0}, s{W}, 5120
        s_add_u32 s{t0}, s{t0}, {L_ASCR}
        v_add_u32 v2, s{t0}, v2
        ds_write_b64 v2, {vr(PK,2)}
        ds_write_b64 v2, {vr(PK+2,2)} offset:16
        ds_write_b64 v2, {vr(PK+4,2)} offset:32
        ds_write_b64 v2, {vr(PK+6,2)} offset:48
        ds_write_b64 v2, {vr(PK+8,2)} offset:64
        v_bfe_u32 v3, v0, 2, 2
        v_lshlrev_b32 v3, 1, v3
        v_add_u32 v3, v3, v{HF}
        v_mul_u32_u24 v3, 160, v3
        v_add_u32 v3, s{t0}, v3
        v_and_b32 v4, 1, v0
        v_lshl_add_u32 v4, v4, 3, v3
        v_and_b32 v5, 3, v0
        v_lshl_add_u32 v3, v5, 3, v3
        v_bfe_u32 v5, v0, 4, 1
        v_lshl_add_u32 v3, v5, 5, v3
        s_waitcnt lgkmcnt(0)
        """)
        for sub in range(2):
            for t in range(2):
                a(f"ds_read_b64_tr_b16 {vr(FA+8*sub+2*t,2)}, v3 offset:{sub*1280+t*80}")
                a(f"ds_read_b64_tr_b16 {vr(FA+8*sub+4+2*t,2)}, v4 offset:{sub*1280+t*80+64}")
        features(XQ, XQR, PQ)
        a(f"""
        s_waitcnt lgkmcnt(0)
        v_mfma_f32_32x32x16_bf16 {vr(KV0,16)}, {vr(FA,4)}, {vr(AVF,4)}, 0
        v_mfma_f32_32x32x16_bf16 {vr(KV0+16,16)}, {vr(FA+4,4)}, {vr(AVF,4)}, 0
        v_mfma_f32_32x32x16_bf16 {vr(KV0,16)}, {vr(FA+8,4)}, {vr(AVF+4,4)}, {vr(KV0,16)}
        v_mfma_f32_32x32x16_bf16 {vr(KV0+16,16)}, {vr(FA+12,4)}, {vr(AVF+4,4)}, {vr(KV0+16,16)}
        v_mul_u32_u24 v2, 80, v0
        v_add_u32 v2, s{t0}, v2
        s_lshl_b32 s{t1}, s{W}, 10
        v_add_u32 v175, s{t1}, v{L16}
        s_nop 9
        """)
        for q in range(5): a(f"ds_write_b128 v2, {vr(KV0+4*q,4)} offset:{16*q}")
        a("s_waitcnt lgkmcnt(0)\ns_barrier")
        def b():
            a(f"v_add_u32 v2, {L_ASCR}, v175")
            for w in range(8): a(f"ds_read_b128 {vr(KVL+4*w,4)}, v2 offset:{5120*w}")
            a(f"""
            s_lshl_b32 s{t0}, s{H}, 3
            s_add_u32 s{t0}, s{t0}, s{QB}
            s_mul_i32 s{t0}, s{t0}, 5120
            s_add_u32 s{t0}, s{t0}, {WS_KVP}
            s_waitcnt lgkmcnt(0)
            """)
            sum8()
            a(f"buffer_store_dwordx4 {vr(KVL,4)}, v175, {WS}, s{t0} offen sc1")
        only(0, 5, b)
    def hook11():
        def b():
            hq_line(FKV)
            a("s_waitcnt vmcnt(0)")
            flag_store(t0)
        only(0, 5, b)
    def hook13():
        def b():
            a(f"""
            v_and_b32 v2, 7, v0
            v_min_u32 v2, 4, v2
            v_lshlrev_b32 v2, 3, v2
            v_lshrrev_b32 v3, 3, v0
            v_lshl_add_u32 v2, v3, 7, v2
            s_lshl_b32 s{t0}, s{H}, 10
            s_add_u32 s{t0}, s{t0}, {FKV}
            v_add_u32 v{PL+4}, s{t0}, v2
            """)
            poll_issue()
        only(0, 5, b)
    def hook14():
        only(0, 5, lambda: poll_check(0))
        a("s_waitcnt vmcnt(0) lgkmcnt(0)\ns_barrier")
        def b():
            a(f"s_mul_i32 s{t0}, s{H}, {8*5120}\ns_add_u32 s{t0}, s{t0}, {WS_KVP}")
            for j in range(8): a(f"buffer_load_dwordx4 {vr(KVL+4*j,4)}, v175, {WS}, s{t0} offen sc1\ns_add_u32 s{t0}, s{t0}, 5120")
        only(0, 5, b)
        return dma_quarter(3, 8, W)
    def o_store(o, tile_s, br):
        a(f"""
        v_rcp_f32 v{o+11}, v{o+10}
        s_lshl_b32 s{t0}, s{tile_s}, 5
        s_add_u32 s{t0}, s{t0}, s{H}
        s_lshl_b32 s{t1}, s{t0}, 10
        s_add_u32 s{t1}, s{t1}, {WS_O + br*4*MB}
        """)
        for r in range(10): a(f"v_mul_f32 v{o+r}, v{o+r}, v{o+11}")
        for r in range(5): a(f"v_cvt_pk_bf16_f32 v{o+12+r}, v{o+2*r}, v{o+2*r+1}")
        a(f"""
        buffer_store_dwordx4 {vr(o+12,4)}, v{L16}, {WS}, s{t1} offen sc1
        s_lshl_b32 s{t0}, s{t0}, 7
        s_add_u32 s{t0}, s{t0}, {WS_O + br*4*MB + 2*MB}
        v_lshlrev_b32 v{o+11}, 2, v0
        s_mov_b32 exec_hi, 0
        buffer_store_dword v{o+16}, v{o+11}, {WS}, s{t0} offen sc1
        s_mov_b64 exec, -1
        """)
    def hook16(nq):
        KA, KP, NN = 176, 196, 206
        def b():
            a(f"s_waitcnt vmcnt({nq})")
            sum8()
            a(f"v_add_u32 v2, {L_KVS}, v175\nds_write_b128 v2, {vr(KVL,4)}")
        only(0, 5, b)
        a(f"v_mul_u32_u24 v2, 80, v0\nv_add_u32 v2, {L_KVS}, v2\ns_waitcnt lgkmcnt(0)\ns_barrier")
        for q in range(5): a(f"ds_read_b128 {vr(KA+4*q,4)}, v2 offset:{16*q}")
        a("s_waitcnt lgkmcnt(0)")
        for r in range(9): a(f"v_cvt_pk_bf16_f32 v{KP+r}, v{KA+2*r}, v{KA+2*r+1}")
        a(f"""
        v_mov_b32 v{KP+9}, 0
        s_nop 1
        v_mfma_f32_32x32x16_bf16 {vr(NN,16)}, {vr(KP,4)}, {vr(PQ,4)}, 0
        v_mfma_f32_32x32x16_bf16 {vr(NN,16)}, {vr(KP+4,4)}, {vr(PQ+4,4)}, {vr(NN,16)}
        v_mfma_f32_32x32x8_bf16 {vr(NN,16)}, {vr(KP+8,2)}, {vr(PQ+8,2)}, {vr(NN,16)}
        s_nop 11
        v_mov_b32 v{NN+20}, v{NN+10}
        s_nop 1
        v_permlane32_swap_b32 v{NN+10}, v{NN+20}
        v_add_f32 v{NN+10}, {f32bits(1e-6)}, v{NN+10}
        """)
        o_store(NN, S_AT, 0)
    def wo_dma(groups, lds_of):
        for g in groups:
            rem = 3 if g == 8 else 0
            a(f"s_add_u32 s{t2}, s{t5}, {0 if g == 8 else g*72*1152}\ns_lshl_b32 s{t0}, s{W}, 10")
            for i in range(2):
                a(f"s_add_u32 m0, s{t0}, {lds_of(g) - 4096 + 4096*i}\ns_nop 0\nbuffer_load_dwordx4 v{WOP+rem+i}, {SP}, s{t2} offen lds")
            lab = a.newlabel(N + "_p8")
            a(f"s_cmp_eq_u32 s{W}, {4 + g % 4}\ns_cbranch_scc0 {lab}\ns_mov_b32 m0, {lds_of(g) + 8192}\ns_nop 0\nbuffer_load_dwordx4 v{WOP+rem+2}, {SP}, s{t2} offen lds")
            a.label(lab)
    def hook19():
        hq_line(FOA)
        a("s_waitcnt vmcnt(0)")
        flag_store(t0)
        a("s_barrier")
        def b():
            srd(SP, P_AWO, 576*1152)
            a(f"s_mul_i32 s{t5}, s{QB}, 144")
            wo_dma(range(9), lambda g: L_WOA + 9216*g)
        only(4, 8, b)
    def hook24():
        def b():
            a(f"""
            v_lshrrev_b32 v2, 1, v0
            v_and_b32 v3, 1, v0
            v_lshlrev_b32 v3, 3, v3
            v_lshl_add_u32 v2, v2, 10, v3
            s_lshr_b32 s{t0}, s{H}, 2
            s_lshl_b32 s{t0}, s{t0}, 7
            s_and_b32 s{t1}, s{H}, 3
            s_lshl_b32 s{t1}, s{t1}, 4
            s_add_u32 s{t0}, s{t0}, s{t1}
            s_add_u32 s{t0}, s{t0}, {FOA}
            v_add_u32 v{PL+4}, s{t0}, v2
            """)
            poll_issue()
        only(4, 8, b)
    OF = 176
    def o_loads(br):
        a(f"""
        s_lshl_b32 s{t0}, s{H}, 1
        s_and_b32 s{t1}, s{W}, 1
        s_add_u32 s{t0}, s{t0}, s{t1}
        s_lshl_b32 s{t0}, s{t0}, 5
        s_bfe_u32 s{t1}, s{W}, {(1<<16)|1}     ; k half
        s_lshl_b32 s{t1}, s{t1}, 4
        s_add_u32 s{t0}, s{t0}, s{t1}
        s_lshl_b32 s{t1}, s{t0}, 10
        s_add_u32 s{t1}, s{t1}, {WS_O + br*4*MB}
        s_lshl_b32 s{t0}, s{t0}, 7
        s_add_u32 s{t0}, s{t0}, {WS_O + br*4*MB + 2*MB}
        v_lshlrev_b32 v6, 2, v{L32}
        v_lshl_add_u32 v6, v{HF}, 9, v6
        """)
        for s in range(16):
            if s and s % 4 == 0: a(f"s_add_u32 s{t1}, s{t1}, 4096")
            a(f"buffer_load_dwordx4 {vr(OF+4*s,4)}, v{L16}, {WS}, s{t1} offen offset:{1024*(s%4)} sc1")
        for u in range(2):
            for i in range(4): a(f"buffer_load_dword v{OF+64+4*u+i}, v6, {WS}, s{t0} offen offset:{1024*u+128*i} sc1")
    def hook26():
        only(4, 8, lambda: poll_check(0))
        a("s_waitcnt lgkmcnt(0)\ns_barrier")
        only(4, 8, lambda: o_loads(0))
    cnt = {}
    hooks = {2: hook2, 4: hook4, 6: lambda: cnt.__setitem__(2, hook6()), 8: lambda: hook8(cnt[2]), 11: hook11, 13: hook13,
             14: lambda: cnt.__setitem__(3, hook14()), 16: lambda: hook16(cnt[3]), 19: hook19, 24: hook24, 26: hook26}
    for j in range(32):
        X, Y = (SA, SB) if j % 2 == 0 else (SB, SA)
        Vc, Vn = (VA, VB) if j % 2 == 0 else (VB, VA)
        def ex(i0, i1):
            for i in range(i0, i1): a(f"v_exp_f32 v{X+i}, v{X+i}")
        last = j == 31
        if OPT["prio"]: a(f"s_setprio {3 - j % 4}")
        a("s_waitcnt lgkmcnt(0)")
        if not last: a(f"v_mfma_f32_32x32x16_bf16 {vr(Y,16)}, {vr(KM,4)}, {vr(QM0,4)}, 0")
        else: a("s_nop 1")
        ex(0, 4)
        if j: smf(O1, Vn+4, Y+24)
        ex(4, 8)
        if not last:
            rdV(j+1)
            a(f"v_mfma_f32_32x32x16_bf16 {vr(Y+16,16)}, {vr(KM,4)}, {vr(QM1,4)}, 0")
        ex(8, 12)
        smf(O0, Vc, X)
        ex(12, 16)
        if j in hooks: hooks[j]()
        if j == 16: a.stamp(8)
        if j < 30: rdKm(j+2)
        elif not last: a("s_nop 0")
        if not last: a(f"v_mfma_f32_32x32x4_2b_bf16 {vr(Y,32)}, {vr(KR,2)}, {vr(QR,2)}, {vr(Y,32)}")
        ex(16, 24)
        if j < 30: rdKr(j+2)
        smf(O0, Vc+4, X+8)
        ex(24, 28)
        smf(O1, Vc, X+16)
        ex(28, 32)
    a("s_nop 1")
    smf(O1, VB+4, SB+24)
    a("s_setprio 0")
    a.stamp(9)

    OACC, OW = 72, 120
    def out_proj(br, lds_of_step, tag):
        a(f"""
        v_bfe_u32 v2, v0, 2, 2
        v_lshl_add_u32 v2, v2, 1, v{HF}
        v_mul_u32_u24 v2, 288, v2
        v_and_b32 v3, 3, v0
        v_lshl_add_u32 v2, v3, 3, v2
        v_bfe_u32 v3, v0, 4, 1
        v_lshl_add_u32 v2, v3, 5, v2
        s_bitcmp1_b32 s{W}, 1
        s_cselect_b32 s{t0}, {lds_of_step(16) - lds_of_step(0)}, 0
        s_cselect_b32 s{t1}, {2*2304}, 0
        s_add_u32 s{t0}, s{t0}, {lds_of_step(0)}
        s_add_u32 s{t1}, s{t1}, {lds_of_step(32)}
        v_add_u32 v3, s{t1}, v2
        v_add_u32 v2, s{t0}, v2
        """)
        def wreads(s):
            b = OW + 12*(s & 1)
            base, off = ("v2", s*2304) if s < 16 else ("v3", (s-16)*2304)
            return [f"ds_read_b64_tr_b16 {vr(b+4*ct+2*t,2)}, {base} offset:{off + ct*64 + t*144}" for ct in range(3) for t in range(2)]
        return wreads
    def out_mfma(wreads, vmw):
        for l in wreads(0): a(l)
        for s in range(18):
            nxt = wreads(s+1) if s < 17 else []
            b = OW + 12*(s & 1)
            a(f"s_waitcnt vmcnt({vmw(s)}) lgkmcnt(0)")
            for ct in range(3):
                d = vr(OACC+16*ct, 16)
                a(f"v_mfma_f32_32x32x16_bf16 {d}, {vr(b+4*ct,4)}, {vr(OF+4*s,4)}, {d if s else 0}")
                for l in nxt[3*ct:3*ct+3] if ct < 2 else []: a(l)
    def red_write(tag):
        a(f"""
        v_mul_u32_u24 v4, 80, v0
        s_and_b32 s{t0}, s{W}, 3
        s_mul_i32 s{t1}, s{t0}, 5120
        s_add_u32 s{t1}, s{t1}, {L_RED}
        v_add_u32 v5, s{t1}, v4
        s_xor_b32 s{t0}, s{t0}, 2
        s_mul_i32 s{t0}, s{t0}, 5120
        s_add_u32 s{t0}, s{t0}, {L_RED}
        v_add_u32 v4, s{t0}, v4
        s_bitcmp1_b32 s{W}, 1
        s_nop 3
        s_cbranch_scc1 {N}_rw1{tag}
        """)
        for q in range(4): a(f"ds_write_b128 v5, {vr(OACC+16+4*q,4)} offset:{16*q}")
        a(f"s_branch {N}_rw2{tag}")
        a.label(f"{N}_rw1{tag}")
        for q in range(4): a(f"ds_write_b128 v5, {vr(OACC+4*q,4)} offset:{16*q}")
        a(f"ds_write_b128 v5, {vr(OACC+32,4)} offset:64")
        for r in range(16): a(f"v_mov_b32 v{OACC+r}, v{OACC+16+r}")
        a.label(f"{N}_rw2{tag}")
    def red_read_store(br, tag):
        R = 16
        for q in range(5): a(f"ds_read_b128 {vr(R+4*q,4)}, v4 offset:{16*q}")
        srd(SD, P_OUT, 2048*2304)
        rho_v(a, "v6", f"v{L32}", "v7")
        a(f"""
        s_lshl_b32 s{t0}, s{H}, 1
        s_and_b32 s{t1}, s{W}, 1
        s_add_u32 s{t0}, s{t0}, s{t1}
        s_lshl_b32 s{t0}, s{t0}, 5
        v_add_u32 v6, s{t0}, v6
        v_mul_u32_u24 v6, 2304, v6
        v_lshl_add_u32 v7, v{HF}, 3, v6
        v_lshl_add_u32 v6, v{HF}, 4, v6
        s_mul_i32 s{t0}, s{QB}, 144
        s_add_u32 s{t0}, s{t0}, {br*1152}
        s_bitcmp1_b32 s{W}, 1
        s_cselect_b32 s{t1}, 64, 0
        s_add_u32 s{t1}, s{t1}, s{t0}
        s_waitcnt lgkmcnt(0)
        """)
        for r in range(0, 16, 2): a(f"v_pk_add_f32 {vr(OACC+r,2)}, {vr(OACC+r,2)}, {vr(R+r,2)}")
        for jp in range(2):
            d = OACC + 8*jp; o = 40 + 4*jp
            for r in range(4): a(f"v_cvt_pk_bf16_f32 v{o+r}, v{d+2*r}, v{d+2*r+1}")
            a(f"s_nop 1\nv_permlane32_swap_b32 v{o}, v{o+2}\nv_permlane32_swap_b32 v{o+1}, v{o+3}")
            a(f"buffer_store_dwordx4 {vr(o,4)}, v6, {SD}, s{t1} offen offset:{32*jp}")
        a(f"""
        s_bitcmp1_b32 s{W}, 1
        s_cbranch_scc1 {N}_rs{tag}
        v_pk_add_f32 {vr(OACC+32,2)}, {vr(OACC+32,2)}, {vr(R+16,2)}
        v_pk_add_f32 {vr(OACC+34,2)}, {vr(OACC+34,2)}, {vr(R+18,2)}
        v_cvt_pk_bf16_f32 v48, v{OACC+32}, v{OACC+33}
        v_cvt_pk_bf16_f32 v49, v{OACC+34}, v{OACC+35}
        buffer_store_dwordx2 v[48:49], v7, {SD}, s{t0} offen offset:128
        """)
        a.label(f"{N}_rs{tag}")
    wob = lambda g: 9216*g if g < 8 else L_WOA
    a(f"""
    v_mul_u32_u24 v2, 48, v0
    s_and_b32 s{t0}, s{W}, 3
    s_mul_i32 s{t0}, s{t0}, 6144
    s_add_u32 s{t0}, s{t0}, {L_CMB}
    v_add_u32 v2, s{t0}, v2
    s_cmp_ge_u32 s{W}, 4
    s_cbranch_scc0 {N}_tx
    s_nop 5
    """)
    for t in range(2):
        for q in range(3): a(f"ds_write_b128 v2, {vr(O0+16*t+4*q,4)} offset:{3072*t+16*q}")
    a("s_waitcnt lgkmcnt(0)\ns_barrier")
    wr = out_proj(0, lambda s: L_WOA + 2304*s, "a")
    srd(SP, P_BWO, 576*1152)
    a(f"s_mul_i32 s{t5}, s{QB}, 144\ns_waitcnt vmcnt(0)")
    wo_dma([0, 4, 5, 6, 7], wob)
    out_mfma(wr, lambda s: 63)
    a("s_barrier")
    wo_dma([1, 2, 3, 8], wob)
    red_write("a")
    a("s_waitcnt lgkmcnt(0)\ns_barrier")
    a.stamp(10)
    a("s_waitcnt vmcnt(0)")
    red_read_store(0, "a")
    a("s_barrier")
    a.stamp(11)
    a.stamp_flush(12, W, 0)
    a("s_endpgm")
    a.label(f"{N}_tx")
    a("s_barrier")
    R = 104
    for t in range(2):
        for q in range(3): a(f"ds_read_b128 {vr(R+12*t+4*q,4)}, v2 offset:{3072*t+16*q}")
    a(f"s_mov_b32 s{KH}, 0\ns_waitcnt lgkmcnt(0)")
    for t in range(2):
        for r in range(0, 12, 2): a(f"v_pk_add_f32 {vr(O0+16*t+r,2)}, {vr(O0+16*t+r,2)}, {vr(R+12*t+r,2)}")
    a.label(f"{N}_ftile")
    a(f"v_mov_b32 v2, v{O0+10}\nv_add_f32 v3, abs(v{O0}), abs(v{O0+1})")
    for r in range(2, 10): a(f"v_add_f32 v3, v3, abs(v{O0+r})")
    a(f"""
    v_permlane32_swap_b32 v{O0+10}, v2
    s_mov_b32 s{t0}, {f32bits(2.0**-80)}
    s_mov_b32 s{t1}, {f32bits(2.0**100)}
    s_mov_b32 s{t2}, {f32bits(2.0**126)}
    v_cmp_le_f32 s[68:69], s{t0}, v{O0+10}
    v_cmp_ge_f32 vcc, s{t1}, v{O0+10}
    s_and_b64 s[68:69], s[68:69], vcc
    v_cmp_ge_f32 vcc, s{t2}, v3
    s_and_b64 s[68:69], s[68:69], vcc
    s_cmp_eq_u64 s[68:69], -1
    s_cbranch_scc0 {N}_slow
    """)
    a.label(f"{N}_fin")
    for r in range(11): a(f"v_mov_b32 v{SA+r}, v{O0+r}")
    o_store(SA, S_QT, 1)
    a(f"s_cmp_eq_u32 s{KH}, 0\ns_cbranch_scc0 {N}_fdone")
    for r in range(11): a(f"v_mov_b32 v{O0+r}, v{O1+r}")
    for r in range(4): a(f"v_mov_b32 v{QM0+r}, v{QM1+r}")
    a(f"s_mov_b32 s{KH}, 1\ns_add_u32 s{S_QT}, s{S_QT}, 1\ns_add_u32 s{S_QRO}, s{S_QRO}, 128\ns_branch {N}_ftile")
    a.label(f"{N}_fdone")
    hq_line(FOB)
    a(f"""
    v_lshlrev_b32 v2, 10, v{L32}
    s_lshr_b32 s{t2}, s{H}, 2
    s_lshl_b32 s{t2}, s{t2}, 7
    s_and_b32 s{t1}, s{H}, 3
    s_lshl_b32 s{t1}, s{t1}, 3
    s_add_u32 s{t2}, s{t2}, s{t1}
    s_add_u32 s{t2}, s{t2}, {FOB}
    v_add_u32 v{PL+4}, s{t2}, v2
    s_waitcnt vmcnt(0)
    """)
    flag_store(t0)
    a.stamp(10)
    wr = out_proj(1, lambda s: 2304*s if s < 32 else L_WOA + 2304*(s-32), "b")
    a("s_barrier\ns_barrier")
    poll_issue()
    poll_check(0)
    o_loads(1)
    a.stamp(11)
    a("s_barrier")
    out_mfma(wr, lambda s: 23 - s if s < 16 else (4 if s == 16 else 0))
    red_write("b")
    a("s_waitcnt lgkmcnt(0)\ns_barrier")
    red_read_store(1, "b")
    if STAMPS: a("s_waitcnt vmcnt(0)")
    a.stamp(4)
    a.stamp_flush(12, W, 0)
    a("s_endpgm")
    a.label(f"{N}_slow")
    MX = 7
    a(f"""
    v_lshlrev_b32 v4, 2, v{L32}
    v_lshl_add_u32 v5, v{HF}, 30, v4
    buffer_load_dword v{QR}, v4, {WS}, s{S_QRO} offen sc1
    v_mov_b32 v{MX}, 0xff800000
    """)
    for r in range(16): a(f"v_mov_b32 v{O0+r}, 0")
    for ps in range(2):
        a(f"s_mov_b32 s{t0}, s{S_KM}\ns_mov_b32 s{t1}, s{S_KR}\ns_add_u32 s{t2}, s{S_V}, 8192\ns_mov_b32 s{t3}, 64")
        a.label(f"{N}_slow{ps}")
        a(f"""
        buffer_load_dwordx4 {vr(KM,4)}, v{L16}, {WS}, s{t0} offen sc1
        buffer_load_dword v{KR}, v5, {WS}, s{t1} offen sc1
        """)
        if ps: a(f"""
        s_mov_b64 exec, {VM}
        buffer_load_dwordx4 {vr(VA,4)}, v{VOFF}, {WS}, s{t2} offen sc1
        buffer_load_dwordx4 {vr(VA+4,4)}, v{VOFF}, {WS}, s{t2} offen offset:576 sc1
        s_mov_b64 exec, -1
        """)
        a(f"""
        s_add_u32 s{t0}, s{t0}, 1024
        s_add_u32 s{t1}, s{t1}, 128
        s_add_u32 s{t2}, s{t2}, 1152
        s_waitcnt vmcnt(0)
        v_mfma_f32_32x32x16_bf16 {vr(SB,16)}, {vr(KM,4)}, {vr(QM0,4)}, 0
        v_mfma_f32_32x32x8_bf16 {vr(SB,16)}, {vr(KR,2)}, {vr(QR,2)}, {vr(SB,16)}
        s_nop 11
        """)
        if ps == 0:
            for r in range(0, 16, 2): a(f"v_max3_f32 v{MX}, v{MX}, v{SB+r}, v{SB+r+1}")
        else:
            for r in range(16): a(f"v_sub_f32 v{SB+r}, v{SB+r}, v{MX}")
            for r in range(16): a(f"v_exp_f32 v{SB+r}, v{SB+r}")
            a("s_nop 1"); smf(O0, VA, SB); smf(O0, VA+4, SB+8)
        a(f"s_sub_u32 s{t3}, s{t3}, 1\ns_cmp_lg_u32 s{t3}, 0\ns_nop 7\ns_cbranch_scc1 {N}_slow{ps}")
        if ps == 0: a(f"v_mov_b32 v4, v{MX}\ns_nop 1\nv_permlane32_swap_b32 v{MX}, v4\nv_max_f32 v{MX}, v{MX}, v4")
    a(f"""
    s_nop 7
    v_mov_b32 v2, v{O0+10}
    s_nop 1
    v_permlane32_swap_b32 v{O0+10}, v2
    s_branch {N}_fin
    """)
    a.label(f"{N}_end")
    a("s_endpgm")
    return a.lines, 256

if __name__ == "__main__":
    import sys
    NAME = "concat_heads__linear_kernel_hedgehog__softmax_full_mha__prompt"
    hdr = open("cdna_kernels/" + NAME + ".s.ref").read().split("; Override launch")[0]
    s = hdr + f"; @launch grid=(256,1,1) block=(512,1,1) lds={LDS}\n" + '.amdgcn_target "amdgcn-amd-amdhsa--gfx950"\n'
    lines, nv = gen(NAME + "_kernel")
    code, e = kernel_text(NAME + "_kernel", lines, nv, nsgpr=102, roles=[{"s24": w} for w in range(8)], track=["s24", "s34", "s66", "s62", "s68", "s69", "s60", "s58"])
    out = sys.argv[1] if len(sys.argv) > 1 else "fk.s"
    open(out, "w").write(s + code)
    print("wrote", out, len(s + code), "bytes; check errors:", e)
```
